```python
import torch

def _softmax(x, axis=-1):
    return torch.softmax(x, dim=axis)
def _gelu(x):
    return torch.nn.functional.gelu(x, approximate="tanh")
def _silu(x):
    return torch.nn.functional.silu(x)
def _sigmoid(x):
    return torch.sigmoid(x)
def _layernorm(x, axis=-1, eps=1e-5):
    m = x.mean(dim=axis, keepdim=True)
    v = x.var(dim=axis, keepdim=True, unbiased=False)
    return (x - m) / torch.sqrt(v + eps)
def _scatter_add(tgt, idx, src, axis=0):
    return tgt.clone().index_add_(axis, idx, src)
def _segment_sum(src, seg, n):
    out = torch.zeros((n,) + src.shape[1:], dtype=src.dtype)
    return out.index_add_(0, seg, src)
def _pad(x, pw):
    flat = tuple(v for pair in reversed(pw) for v in pair)
    return torch.nn.functional.pad(x, flat)

kernel_name = 'parallel_sum__grouped_kv_mqa__dense_activation_gelu__prompt'

def setup_inputs():

    _w = (lambda a: (lambda t: t.to(torch.bfloat16) if t.is_floating_point() else t)(torch.as_tensor(a)))
    def _A_setup():
        B, S, D, H = 1, 2048, 512, 32
        Dh = D // H
        return {
            "x": _w((lambda *s: torch.randn(*s, dtype=torch.bfloat16) * 0.05)(B, S, D)),
            "wq": _w((lambda *s: torch.randn(*s, dtype=torch.bfloat16) * 0.05)(D, H * Dh)),
            "wk": _w((lambda *s: torch.randn(*s, dtype=torch.bfloat16) * 0.05)(D, Dh)),
            "wv": _w((lambda *s: torch.randn(*s, dtype=torch.bfloat16) * 0.05)(D, Dh)),
            "wo": _w((lambda *s: torch.randn(*s, dtype=torch.bfloat16) * 0.05)(H * Dh, D)),
        }
    _A_in = _A_setup()

    def _B_setup():
        B, S, D, F = 1, 2048, 512, 1792
        return {
            "x": _w((lambda *s: torch.randn(*s, dtype=torch.bfloat16) * 0.05)(B, S, D)),
            "w1": _w((lambda *s: torch.randn(*s, dtype=torch.bfloat16) * 0.8)(D, F) * (D ** -0.5)),
            "b1": _w((lambda *s: torch.randn(*s, dtype=torch.bfloat16) * 12.8)(F) * 0.01),
            "w2": _w((lambda *s: torch.randn(*s, dtype=torch.bfloat16) * 0.8)(F, D) * (F ** -0.5)),
            "b2": _w((lambda *s: torch.randn(*s, dtype=torch.bfloat16) * 12.8)(D) * 0.01),
        }
    _B_in = _B_setup()

    return {
        "A_x": _A_in["x"],
        "A_wq": _A_in["wq"],
        "A_wk": _A_in["wk"],
        "A_wv": _A_in["wv"],
        "A_wo": _A_in["wo"],
        "B_x": _B_in["x"],
        "B_w1": _B_in["w1"],
        "B_b1": _B_in["b1"],
        "B_w2": _B_in["w2"],
        "B_b2": _B_in["b2"],
    }

def reference(A_x, A_wq, A_wk, A_wv, A_wo, B_x, B_w1, B_b1, B_w2, B_b2):
    def _A_ref(x, wq, wk, wv, wo):
        B, S, D = x.shape
        H = 32
        Dh = D // H
        q = (lambda x, *d: x.permute(*d))((x @ wq).reshape(B, S, H, Dh), 0, 2, 1, 3)
        k = x @ wk
        v = x @ wv
        scores = torch.einsum("bhqd,bkd->bhqk", q, k) * (Dh ** -0.5)
        p = _softmax(scores, axis=-1)
        o = torch.einsum("bhqk,bkd->bhqd", p, v)
        return (lambda x, *d: x.permute(*d))(o, 0, 2, 1, 3).reshape(B, S, H * Dh) @ wo

    def _B_ref(x, w1, b1, w2, b2):
        h = torch.einsum("bsd,df->bsf", x, w1) + b1
        h = _gelu(h)
        return torch.einsum("bsf,fd->bsd", h, w2) + b2

    x = A_x
    xn = _layernorm(x, axis=-1)
    return x + _A_ref(xn, A_wq, A_wk, A_wv, A_wo) + _B_ref(xn, B_w1, B_b1, B_w2, B_b2)
```

```python
import re
class Asm:
    def __init__(self):
        self.lines=[]
    def __call__(self, s=''):
        for l in s.split('\n'):
            l=l.rstrip()
            if l.strip()=='' : continue
            self.lines.append(l if (l.strip().endswith(':') or l.strip().startswith('.') or l.strip().startswith(';')) else ' '+l.strip())
    def nop(self,n):
        while n>0:
            k=min(n,16); self(f's_nop {k-1}'); n-=k
    def text(self): return '\n'.join(self.lines)+'\n'

def vr(a,n=1): return f'v{a}' if n==1 else f'v[{a}:{a+n-1}]'
def sr(a,n=1): return f's{a}' if n==1 else f's[{a}:{a+n-1}]'

_reg=re.compile(r'\b([vsa])(?:(\d+)|\[(\d+):(\d+)\])')
def regs(tok):
    out=set()
    for m in _reg.finditer(tok):
        k=m.group(1)
        if m.group(2) is not None: out.add((k,int(m.group(2))))
        else: out.update((k,i) for i in range(int(m.group(3)),int(m.group(4))+1))
    if re.search(r'\bvcc\b',tok): out.add(('s','vcc'))
    if re.search(r'\bexec\b',tok): out.add(('s','exec'))
    if re.search(r'\bm0\b',tok): out.add(('s','m0'))
    return out
TRANS=('v_exp_','v_log_','v_rcp_','v_rsq_','v_sqrt_','v_sin_','v_cos_')
def parse(line):
    s=line.split(';')[0].strip()
    if not s or s.endswith(':') or s.startswith('.'): return None
    p=s.split(None,1); op=p[0]; rest=p[1] if len(p)>1 else ''
    ops=[x.strip() for x in re.split(r',(?![^\[]*\])',rest)]
    d=dict(op=op,text=s,w=set(),r=set(),kind='other',slots=1)
    if op=='s_nop': d['slots']=int(ops[0],0)+1; d['kind']='nop'; return d
    if op.startswith('v_mfma') or op.startswith('v_smfmac'):
        d['kind']='mfma'; d['w']=regs(ops[0]); d['A']=regs(ops[1]); d['B']=regs(ops[2])
        if op.startswith('v_smfmac'): d['C']=regs(ops[0]); d['B']|=regs(ops[3])
        else: d['C']=regs(ops[3])
        d['r']=d['A']|d['B']|d['C']
        d['passes']=8 if '32x32' in op else (4 if '16x16' in op else 2)
        return d
    if op.startswith('v_'):
        d['kind']='valu'
        if op.startswith('v_cmp'):
            d['w']=regs(ops[0]); d['r']=set().union(*[regs(o) for o in ops[1:]])
        elif op.startswith('v_permlane') and 'swap' in op:
            d['w']=regs(ops[0])|regs(ops[1]); d['r']=set(d['w']); d['perm']=True
        elif op.startswith('v_readfirstlane') or op.startswith('v_readlane'):
            d['w']=regs(ops[0]); d['r']=set().union(*[regs(o) for o in ops[1:]]); d['rl']=True
        elif op.startswith('v_add_co') or op.startswith('v_addc_co') or op.startswith('v_sub_co'):
            d['w']=regs(ops[0])|regs(ops[1]); d['r']=set().union(*[regs(o) for o in ops[2:]])
        else:
            d['w']=regs(ops[0]); d['r']=set().union(*[regs(o) for o in ops[1:]]) if len(ops)>1 else set()
            if op.startswith('v_fmac') or op.startswith('v_dot2c') or 'UNUSED_PRESERVE' in s: d['r']|=d['w']
            if op.startswith('v_cndmask') and len(ops)==3: d['r'].add(('s','vcc'))
        d['trans']=op.startswith(TRANS)
        d['dpp']=('_dpp' in op) or ('quad_perm' in s) or ('row_' in s)
        d['dot']=op.startswith('v_dot')
        return d
    if op.startswith('buffer_') or op.startswith('global_'):
        d['kind']='vmem'
        if 'load' in op and not re.search(r'\blds\b',s):
            d['w']=regs(ops[0]); d['r']=set().union(*[regs(o) for o in ops[1:]])
        elif 'load' in op:
            d['r']=set().union(*[regs(o) for o in ops]); d['r'].add(('s','m0')); d['dma']=True
        else:
            d['r']=set().union(*[regs(o) for o in ops]); d['data']=regs(ops[0]); d['wide']=('x3' in op or 'x4' in op)
            if 'atomic' in op and 'sc0' in s: d['w']=regs(ops[0])
        return d
    if op.startswith('ds_'):
        d['kind']='ds'
        if 'read' in op or 'rtn' in op or 'permute' in op or 'swizzle' in op:
            d['w']=regs(ops[0]); d['r']=set().union(*[regs(o) for o in ops[1:]])
        else: d['r']=set().union(*[regs(o) for o in ops])
        return d
    if op.startswith('s_'):
        d['kind']='salu'
        if op.startswith(('s_cmp','s_cbranch','s_branch','s_waitcnt','s_barrier','s_setprio','s_sleep','s_endpgm','s_setpc')):
            d['r']=set().union(*[regs(o) for o in ops]) if ops else set()
        else:
            d['w']=regs(ops[0]); d['r']=set().union(*[regs(o) for o in ops[1:]]) if len(ops)>1 else set()
            if 'saveexec' in op: d['w'].add(('s','exec'))
        return d
    return d
def check(lines, timeaware=True):
    ins=[(i,parse(l)) for i,l in enumerate(lines)]
    ins=[(i,d) for i,d in ins if d]
    warns=[]
    for n,(li,c) in enumerate(ins):
        dist=0
        for m in range(n-1,max(-1,n-40),-1):
            lp,p=ins[m]
            need=0; why=''
            V=lambda S:{x for x in S if x[0] in 'va'}
            Sg=lambda S:{x for x in S if x[0]=='s'}
            if p['kind']=='valu':
                if c['kind']=='mfma' and V(p['w'])&c['r']: need,why=2,'valu->mfma'
                if c['kind']=='valu':
                    if c.get('perm') and V(p['w'])&c['r']: need,why=2,'valu->permlane'
                    if c.get('dpp') and V(p['w'])&c['r']: need,why=max(need,2),'valu->dpp'
                    if c.get('rl') and V(p['w'])&c['r']: need,why=max(need,1),'valu->readlane'
                    if p.get('trans') and not c.get('trans') and V(p['w'])&c['r']: need,why=max(need,1),'trans->valu'
                    if Sg(p['w'])&c['r']: need,why=max(need,2),'valu sgpr->valu'
                    if p.get('dot') and (V(p['w'])&(c['r']|c['w'])) and not (c['op']==p['op'] and not (V(p['w'])&(c['r']-c['w']))): need,why=max(need,3),'dot->other'
                if c['kind']=='vmem' and Sg(p['w'])&c['r']: need,why=5,'valu sgpr->vmem'
                if p.get('trans') and c['kind'] in('vmem','ds') and V(p['w'])&c['r']: need,why=max(need,1),'trans->mem(conservative)'
                if p.get('dot') and c['kind'] in('vmem','ds','mfma') and V(p['w'])&c['r']: need,why=max(need,3),'dot->other'
            if p['kind']=='mfma':
                ps=p['passes']; big={2:5,4:8,8:12}[ps]; ov={2:4,4:6,8:10}[ps]; war={2:1,4:3,8:7}[ps]
                if c['kind']=='mfma':
                    if p['w']&(c['A']|c['B']): need,why=big,'mfma D->A/B'
                    elif p['w']&c['C']:
                        if not (p['w']==c['C'] and p['passes']==c['passes']): need,why=ov,'mfma D->C overlap'
                        elif ps==2: need,why=2,'mfma2 chain'
                    elif p['w']&c['w']: need,why=0,''
                elif c['kind'] in('valu','vmem','ds'):
                    if p['w']&(V(c['r'])|V(c['w'])): need,why=big,'mfma D->valu/mem'
                    elif c['kind']=='valu' and p['C']&V(c['w']): need,why=war,'mfma C WAR'
            if p['kind']=='salu' and ('s','m0') in p['w'] and c.get('dma'): need,why=1,'m0->dma'
            if p['kind']=='vmem' and p.get('wide') and (p['data']&V(c['w'])) : need,why=2,'store data WAR'
            if need>dist: warns.append(f'line {li+1}: need {need} have {dist} [{why}]  {p["text"]}  ->  {c["text"]}')
            s=p['slots']
            if timeaware:
                if p['kind']=='valu' and p.get('trans'): s=2
                if p['kind']=='mfma': s=3 if p['op'].startswith('v_smfmac') else 2
            dist+=s
            if dist>=20: break
            if p['op'] in('s_branch','s_endpgm','s_setpc_b64'): break
    return warns
```

```python
import sys, math, struct
from asmlib import Asm, vr, sr, check
NAME='parallel_sum__grouped_kv_mqa__dense_activation_gelu__prompt'
def f2u(x): return struct.unpack('<I',struct.pack('<f',x))[0]
def hx(x): return hex(f2u(x))

class Cfg:
    stamps=False
    force_slow=False
    b3pos=18
    spin=200000
cfg=Cfg()

XS=1040; XOFF=0
SLOT0=64*XS; SLOTSZ=10240
def slot(i): return SLOT0+i*SLOTSZ
MISC=slot(8)
C_KV=MISC; C_KMAX=MISC+4; C_QMAX=MISC+8; C_H3=MISC+12; C_S0=MISC+16; C_S1=MISC+20
H3OFF=MISC+1024
R3OFF=MISC+5120
LDS_TOTAL=163840
assert R3OFF+8192<=LDS_TOTAL
WS_KV=0
WS_F2=0x80000
WS_F3=0x90000
WS_O =0x100000
WS_P =0x400000
WS_ST=0x1800000
WS_SIZE=0x2000000
P_X,P_WQ,P_WK,P_WV,P_WO,P_BX,P_W1,P_B1=4,6,8,10,12,14,16,18
P_W2,P_B2,P_OUT,P_DBG,P_WS=20,22,24,26,28
sW=30; sRB=31; sJ=3
R_X=32; R_WA=36; R_WS=40; R_DBG=44; R_T0=48; R_T1=52; R_B=56
sU=60; sKH=61; sODD=62; sPROD=63; sSLOT=64; sWOFF=65; sWSTEP=66; sT=67
sT2=68; sT3=69; sCNT=70; sKVO=71; sC0=72; sC3=73; sONES=74; sPSLOT=75
sEX=76
sST=80
sTMP=100
vL=255
def srd(a,dst,ptr,nbytes):
    a(f's_mov_b32 {sr(dst)}, {sr(ptr)}\ns_mov_b32 {sr(dst+1)}, {sr(ptr+1)}\ns_mov_b32 {sr(dst+2)}, {nbytes}\ns_mov_b32 {sr(dst+3)}, 0x20000')
def MF(d,A,B,C=None):
    c=vr(d,16) if C is None else C
    return f'v_mfma_f32_32x32x16_bf16 {vr(d,16)}, {vr(A,4)}, {vr(B,4)}, {c}'
def MF16(d,A,B,C=None):
    c=vr(d,4) if C is None else C
    return f'v_mfma_f32_16x16x32_bf16 {vr(d,4)}, {vr(A,4)}, {vr(B,4)}, {c}'
def SM(d,A,B,idx): return f'v_smfmac_f32_32x32x32_bf16 {vr(d,16)}, {vr(A,4)}, {vr(B,8)}, {vr(idx)}'
nstamp=[0]
def stamp(a,i):
    if cfg.stamps:
        a(f's_memrealtime s[{sTMP}:{sTMP+1}]\ns_waitcnt lgkmcnt(0)\ns_mov_b32 {sr(sST+i)}, {sr(sTMP)}')
def dump_stamps(a):
    if not cfg.stamps: return
    a('s_waitcnt vmcnt(0) lgkmcnt(0)')
    stamp(a,15)
    for i in range(16): a(f'v_mov_b32 {vr(i)}, {sr(sST+i)}')
    a(f's_lshl_b32 {sr(sT)}, s2, 3\ns_add_u32 {sr(sT)}, {sr(sT)}, {sr(sW)}\ns_lshl_b32 {sr(sT)}, {sr(sT)}, 6\ns_add_u32 {sr(sT)}, {sr(sT)}, {WS_ST}')
    a(f'v_mov_b32 v16, 0\nv_cmp_eq_u32 vcc, 0, {vr(vL)}\ns_and_saveexec_b64 {sr(sEX,2)}, vcc')
    for i in range(4): a(f'buffer_store_dwordx4 {vr(4*i,4)}, v16, {sr(R_WS,4)}, {sr(sT)} offen offset:{16*i}')
    a('s_waitcnt vmcnt(0)')
lab=[0]
def L(s):
    lab[0]+=1; return f'L{s}_{lab[0]}'
def poll(a, vdst, vaddr, srdreg, soff, nlanes, sleep=1):
    l=L('poll'); d=L('pdone')
    a(f's_mov_b32 {sr(sCNT)}, 0')
    a(f's_mov_b64 exec, {hex((1<<nlanes)-1)}' if nlanes<=16 or nlanes==64 else f's_mov_b32 exec_lo, {hex((1<<nlanes)-1)}\ns_mov_b32 exec_hi, 0')
    a(f'{l}:')
    a(f'buffer_load_dword {vr(vdst)}, {vr(vaddr)}, {sr(srdreg,4)}, {soff} offen sc1')
    a(f's_add_u32 {sr(sCNT)}, {sr(sCNT)}, 1\ns_waitcnt vmcnt(0)')
    a(f'v_cmp_eq_u32 vcc, 0, {vr(vdst)}\ns_cmp_gt_u32 {sr(sCNT)}, {cfg.spin}\ns_cbranch_scc1 {d}\ns_cbranch_vccz {d}\ns_sleep {sleep}\ns_branch {l}\n{d}:')
    a('s_mov_b64 exec, -1')
def ldspoll(a, vdst, vaddr, off, val):
    l=L('lp'); d=L('lpd')
    a(f's_mov_b32 {sr(sCNT)}, 0\n{l}:\nds_read_b32 {vr(vdst)}, {vr(vaddr)} offset:{off}\ns_add_u32 {sr(sCNT)}, {sr(sCNT)}, 1\ns_waitcnt lgkmcnt(0)')
    a(f'v_cmp_gt_u32 vcc, {val}, {vr(vdst)}\ns_cmp_gt_u32 {sr(sCNT)}, {cfg.spin*8}\ns_cbranch_scc1 {d}\ns_cbranch_vccz {d}\ns_sleep 1\ns_branch {l}\n{d}:')

GC1=-2.0*math.sqrt(2/math.pi)*math.log2(math.e); GC2=GC1*0.044715
def gelu(a, src, n, tmp, cst, packed):
    for b in range(0,n,8):
        s=src+b; t=tmp
        if packed:
            for i in range(0,8,2): a(f'v_pk_mul_f32 {vr(t+i,2)}, {vr(s+i,2)}, {vr(s+i,2)}')
            for i in range(0,8,2): a(f'v_pk_fma_f32 {vr(t+i,2)}, {vr(t+i,2)}, {vr(cst+2,2)}, {vr(cst,2)}')
            for i in range(0,8,2): a(f'v_pk_mul_f32 {vr(t+i,2)}, {vr(t+i,2)}, {vr(s+i,2)}')
            for i in range(8): a(f'v_exp_f32 {vr(t+i)}, {vr(t+i)}')
            for i in range(0,8,2): a(f'v_pk_add_f32 {vr(t+i,2)}, {vr(t+i,2)}, {vr(cst+4,2)}')
            for i in range(8): a(f'v_rcp_f32 {vr(t+i)}, {vr(t+i)}')
            for i in range(0,8,2): a(f'v_pk_mul_f32 {vr(s+i,2)}, {vr(s+i,2)}, {vr(t+i,2)}')
        else:
            for i in range(8): a(f'v_mul_f32 {vr(t+i)}, {vr(s+i)}, {vr(s+i)}')
            for i in range(8): a(f'v_fma_f32 {vr(t+i)}, {vr(t+i)}, {vr(cst+2)}, {vr(cst)}')
            for i in range(8): a(f'v_mul_f32 {vr(t+i)}, {vr(t+i)}, {vr(s+i)}')
            for i in range(8): a(f'v_exp_f32 {vr(t+i)}, {vr(t+i)}')
            for i in range(8): a(f'v_add_f32 {vr(t+i)}, 1.0, {vr(t+i)}')
            for i in range(8): a(f'v_rcp_f32 {vr(t+i)}, {vr(t+i)}')
            for i in range(8): a(f'v_mul_f32 {vr(s+i)}, {vr(s+i)}, {vr(t+i)}')
def pack(a,dst,src,n):
    for i in range(n//2): a(f'v_cvt_pk_bf16_f32 {vr(dst+i)}, {vr(src+2*i)}, {vr(src+2*i+1)}')

def tr_addr(a, dst, t0, t1, rowexpr, rowbytes, swz):
    a(f'v_and_b32 {vr(t0)}, 15, {vr(vL)}\nv_lshrrev_b32 {vr(t0)}, 2, {vr(t0)}')
    a(f'v_lshrrev_b32 {vr(t1)}, 5, {vr(vL)}')
    mul={'chunk':8,'h4':4,'h8':8}[rowexpr]
    a(f'v_lshl_add_u32 {vr(dst)}, {vr(t1)}, {int(math.log2(mul))}, {vr(t0)}')
    a(f'v_lshlrev_b32 {vr(dst)}, {int(math.log2(rowbytes))}, {vr(dst)}')
    a(f'v_and_b32 {vr(t1)}, 3, {vr(vL)}\nv_lshl_add_u32 {vr(dst)}, {vr(t1)}, 3, {vr(dst)}')
    a(f'v_bfe_u32 {vr(t1)}, {vr(vL)}, 4, 1\nv_lshl_add_u32 {vr(dst)}, {vr(t1)}, 5, {vr(dst)}')
    if swz:
        a(f'v_bfe_u32 {vr(t1)}, {vr(vL)}, 3, 1\nv_lshlrev_b32 {vr(t1)}, 6, {vr(t1)}\nv_xor_b32 {vr(dst)}, {vr(dst)}, {vr(t1)}')
def line_voff(a,dst,t0,t1,stride_sgpr_or_imm):
    a(f'v_lshrrev_b32 {vr(t0)}, 3, {vr(vL)}')
    a(f'v_mul_lo_u32 {vr(dst)}, {vr(t0)}, {stride_sgpr_or_imm}')
    a(f'v_bfe_u32 {vr(t0)}, {vr(vL)}, 4, 1\nv_lshlrev_b32 {vr(t0)}, 2, {vr(t0)}')
    a(f'v_and_b32 {vr(t1)}, 7, {vr(vL)}\nv_xor_b32 {vr(t1)}, {vr(t1)}, {vr(t0)}')
    a(f'v_lshl_add_u32 {vr(dst)}, {vr(t1)}, 4, {vr(dst)}')
def dma(a, ldsexpr, vaddr, srdreg, soff):
    s,imm=ldsexpr
    if s is None: a(f's_mov_b32 m0, {imm}')
    else: a(f's_add_u32 m0, {sr(s)}, {imm}')
    return f'buffer_load_dwordx4 {vr(vaddr)}, {sr(srdreg,4)}, {soff} offen lds'

def build():
    a=Asm()
    a(f's_cmp_ge_u32 s2, 256\ns_cbranch_scc1 LEND')
    if cfg.stamps:
        for i in range(16): a(f's_mov_b32 {sr(sST+i)}, 0')
    stamp(a,0)
    a(f's_load_dwordx16 s[4:19], s[0:1], 0\ns_load_dwordx8 s[20:27], s[0:1], 64\ns_load_dwordx2 s[28:29], s[0:1], 96')
    a(f'v_lshrrev_b32 v1, 6, v0\nv_and_b32 {vr(vL)}, 63, v0\nv_readfirstlane_b32 {sr(sW)}, v1')
    a(f's_and_b32 {sr(sT)}, s2, 7\ns_lshr_b32 {sr(sT2)}, s2, 3')
    a(f's_and_b32 {sr(sRB)}, {sr(sT)}, 3\ns_lshl_b32 {sr(sRB)}, {sr(sRB)}, 3\ns_and_b32 {sr(sT3)}, {sr(sT2)}, 7\ns_add_u32 {sr(sRB)}, {sr(sRB)}, {sr(sT3)}')
    a(f's_lshr_b32 {sr(sJ)}, {sr(sT)}, 2\ns_lshl_b32 {sr(sJ)}, {sr(sJ)}, 2\ns_lshr_b32 {sr(sT3)}, {sr(sT2)}, 3\ns_add_u32 {sr(sJ)}, {sr(sJ)}, {sr(sT3)}')
    a(f's_and_b32 {sr(sU)}, {sr(sW)}, 3\ns_lshr_b32 {sr(sKH)}, {sr(sW)}, 2\ns_and_b32 {sr(sODD)}, {sr(sJ)}, 1')
    a(f's_and_b32 {sr(sT)}, {sr(sRB)}, 1\ns_lshl_b32 {sr(sT)}, {sr(sT)}, 2\ns_bfe_u32 {sr(sT2)}, {sr(sRB)}, 0x20001\ns_add_u32 {sr(sT)}, {sr(sT)}, {sr(sT2)}')
    a(f's_cmp_eq_u32 {sr(sT)}, {sr(sJ)}\ns_cselect_b32 {sr(sPROD)}, {sr(sKH)}, 0')
    a(f's_mul_i32 {sr(sSLOT)}, {sr(sW)}, {SLOTSZ}\ns_add_u32 {sr(sSLOT)}, {sr(sSLOT)}, {SLOT0}')
    a(f's_xor_b32 {sr(sT)}, {sr(sW)}, 4\ns_mul_i32 {sr(sPSLOT)}, {sr(sT)}, {SLOTSZ}\ns_add_u32 {sr(sPSLOT)}, {sr(sPSLOT)}, {SLOT0}')
    a(f's_mul_i32 {sr(sC0)}, {sr(sJ)}, 224\ns_lshl_b32 {sr(sT)}, {sr(sODD)}, 5\ns_mul_i32 {sr(sT2)}, {sr(sODD)}, 192')
    a(f's_add_u32 {sr(sC3)}, {sr(sC0)}, 192\ns_sub_u32 {sr(sC3)}, {sr(sC3)}, {sr(sT2)}\ns_add_u32 {sr(sC0)}, {sr(sC0)}, {sr(sT)}')
    vXO=40
    a(f'v_lshrrev_b32 v2, 3, {vr(vL)}\nv_and_b32 v3, 7, {vr(vL)}\nv_lshlrev_b32 v3, 4, v3\nv_lshl_add_u32 {vr(vXO)}, v2, 10, v3')
    a(f's_lshl_b32 {sr(sT)}, {sr(sRB)}, 16\ns_lshl_b32 {sr(sT2)}, {sr(sW)}, 13\ns_add_u32 {sr(sT)}, {sr(sT)}, {sr(sT2)}')
    a('s_waitcnt lgkmcnt(0)')
    srd(a,R_X,P_X,2048*1024)
    XR=96
    for i in range(8): a(f'buffer_load_dwordx4 {vr(XR+4*i,4)}, {vr(vXO)}, {sr(R_X,4)}, {sr(sT)} offen offset:{128*i}')
    a(f's_cmp_eq_u32 {sr(sU)}, 0')
    a(f's_cselect_b32 {sr(R_WA)}, {sr(P_WQ)}, {sr(P_W1)}\ns_cselect_b32 {sr(R_WA+1)}, {sr(P_WQ+1)}, {sr(P_W1+1)}')
    a(f's_mov_b32 {sr(sT2)}, 3584\ns_cselect_b32 {sr(sT2)}, 1024, {sr(sT2)}\ns_lshl_b32 {sr(R_WA+2)}, {sr(sT2)}, 9\ns_mov_b32 {sr(R_WA+3)}, 0x20000')
    a(f's_lshl_b32 {sr(sWSTEP)}, {sr(sT2)}, 3')
    a(f's_lshl_b32 {sr(sT)}, {sr(sJ)}, 7')
    a(f's_lshl_b32 {sr(sT3)}, {sr(sU)}, 6\ns_add_u32 {sr(sT3)}, {sr(sT3)}, {sr(sC0)}\ns_sub_u32 {sr(sT3)}, {sr(sT3)}, 64')
    a(f's_lshl_b32 {sr(sWOFF)}, {sr(sT3)}, 1\ns_cmp_eq_u32 {sr(sU)}, 0\ns_cselect_b32 {sr(sWOFF)}, {sr(sT)}, {sr(sWOFF)}')
    a(f's_mul_i32 {sr(sT)}, {sr(sWSTEP)}, 32\ns_mul_i32 {sr(sT)}, {sr(sT)}, {sr(sKH)}\ns_add_u32 {sr(sWOFF)}, {sr(sWOFF)}, {sr(sT)}')
    vWD=41; vW0=42; vW1=43; vXA=44; vB0=45; vB1=46; vZ=47
    line_voff(a,vWD,2,3,sr(sT2))
    srd(a,R_WS,P_WS,WS_SIZE); srd(a,R_DBG,P_DBG,256)
    srd(a,R_B,P_B1,3584)
    a(f's_cmp_eq_u32 {sr(sU)}, 0\ns_cselect_b32 {sr(sT)}, 1, {sr(sKH)}\ns_lshl_b32 {sr(sT)}, {sr(sT)}, 20')
    a(f's_lshl_b32 {sr(sT3)}, {sr(sT3)}, 1\ns_and_b32 {sr(sT3)}, {sr(sT3)}, 0xffff\ns_add_u32 {sr(sT3)}, {sr(sT3)}, {sr(sT)}')
    a(f'v_lshrrev_b32 v2, 5, {vr(vL)}\nv_lshlrev_b32 v2, 20, v2\nv_lshl_add_u32 v2, {vr(vL)}, 1, v2')
    lA=L('notprod'); lB=L('filled')
    a(f's_cmp_lg_u32 {sr(sPROD)}, 0\ns_cbranch_scc0 {lA}')
    srd(a,R_T0,P_WK,16384); srd(a,R_T1,P_WV,16384)
    a(f'v_lshlrev_b32 v3, 4, {vr(vL)}\ns_lshl_b32 {sr(sT)}, {sr(sU)}, 12\ns_add_u32 {sr(sT2)}, {sr(sT)}, {slot(4)}')
    for i in range(4):
        a(f's_add_u32 m0, {sr(sT2)}, {i*1024}\ns_add_u32 {sr(sCNT)}, {sr(sT)}, {i*1024}\nbuffer_load_dwordx4 v3, {sr(R_T0,4)}, {sr(sCNT)} offen lds')
        a(f's_add_u32 m0, {sr(sT2)}, {16384+i*1024}\ns_nop 0\nbuffer_load_dwordx4 v3, {sr(R_T1,4)}, {sr(sCNT)} offen lds')
    a(f'buffer_load_ushort v39, v3, {sr(R_B,4)}, 0 offen\nbuffer_load_ushort v39, v3, {sr(R_B,4)}, 0 offen')
    a(f's_branch {lB}\n{lA}:')
    for c in range(10):
        x=dma(a,(sSLOT,c*1024),vWD,R_WA,sr(sWOFF)); a('s_nop 0'); a(x); a(f's_add_u32 {sr(sWOFF)}, {sr(sWOFF)}, {sr(sWSTEP)}')
    a(f'{lB}:')
    a(f'buffer_load_ushort {vr(vB0)}, v2, {sr(R_B,4)}, {sr(sT3)} offen\nbuffer_load_ushort {vr(vB1)}, v2, {sr(R_B,4)}, {sr(sT3)} offen offset:64')
    a(f'v_mov_b32 {vr(vZ)}, 0\nv_lshlrev_b32 v3, 2, {vr(vL)}\nv_add_u32 v3, {MISC}, v3\nds_write_b32 v3, {vr(vZ)}')
    tr_addr(a,vW0,2,3,'chunk',128,True)
    a(f'v_add_u32 {vr(vW0)}, {sr(sSLOT)}, {vr(vW0)}\nv_xor_b32 {vr(vW1)}, 64, {vr(vW0)}')
    a(f'v_and_b32 v2, 31, {vr(vL)}\nv_mul_u32_u24 {vr(vXA)}, {XS}, v2\nv_lshrrev_b32 v2, 5, {vr(vL)}\nv_lshl_add_u32 {vr(vXA)}, v2, 4, {vr(vXA)}')
    a(f's_lshl_b32 {sr(sT)}, {sr(sKH)}, 9\nv_add_u32 {vr(vXA)}, {sr(sT)}, {vr(vXA)}')
    a(f's_mov_b32 {sr(sONES)}, 0x3f803f80')
    a('s_waitcnt vmcnt(12)')
    stamp(a,1)
    for i in range(4): a(f'v_mov_b32 {vr(4+i)}, 0')
    for i in range(32):
        a(f'v_dot2_f32_bf16 {vr(4+i%2)}, {vr(XR+i)}, {sr(sONES)}, {vr(4+i%2)}')
        a(f'v_dot2_f32_bf16 {vr(6+i%2)}, {vr(XR+i)}, {vr(XR+i)}, {vr(6+i%2)}')
    a.nop(3)
    a('v_add_f32 v4, v4, v5\nv_add_f32 v6, v6, v7')
    for dpp in ('quad_perm:[1,0,3,2]','quad_perm:[2,3,0,1]','row_half_mirror'):
        a.nop(1)
        a(f'v_add_f32_dpp v4, v4, v4 {dpp} row_mask:0xf bank_mask:0xf\nv_add_f32_dpp v6, v6, v6 {dpp} row_mask:0xf bank_mask:0xf')
    a(f'v_mul_f32 v4, {hx(1/512)}, v4\nv_mul_f32 v6, {hx(1/512)}, v6')
    a(f'v_fma_f32 v6, -v4, v4, v6\nv_max_f32 v6, 0, v6\nv_add_f32 v6, {hx(1e-5)}, v6\nv_rsq_f32 v8, v6')
    a.nop(1)
    a('v_mul_f32 v10, v4, v8\nv_mov_b32 v9, v8\nv_sub_f32 v10, 0, v10\nv_mov_b32 v11, v10')
    a(f'v_lshrrev_b32 v2, 3, {vr(vL)}\ns_lshl_b32 {sr(sT)}, {sr(sW)}, 3\nv_add_u32 v2, {sr(sT)}, v2\nv_mul_u32_u24 v2, {XS}, v2\nv_and_b32 v3, 7, {vr(vL)}\nv_lshl_add_u32 v2, v3, 4, v2')
    for i in range(8):
        t=12+8*(i%2)
        for k in range(4):
            a(f'v_lshlrev_b32 {vr(t+2*k)}, 16, {vr(XR+4*i+k)}\nv_and_b32 {vr(t+2*k+1)}, 0xffff0000, {vr(XR+4*i+k)}')
        for k in range(4): a(f'v_pk_fma_f32 {vr(t+2*k,2)}, {vr(t+2*k,2)}, v[8:9], v[10:11]')
        for k in range(4): a(f'v_cvt_pk_bf16_f32 {vr(XR+4*i+k)}, {vr(t+2*k)}, {vr(t+2*k+1)}')
        a(f'ds_write_b128 v2, {vr(XR+4*i,4)} offset:{128*i}')
    vBA0=50; vBA1=54; vBB=58
    for r in (vBA0+1,vBA0+2,vBA0+3,vBA1+1,vBA1+2,vBA1+3,vBB+1,vBB+2,vBB+3): a(f'v_mov_b32 {vr(r)}, 0')
    a(f'v_mov_b32 {vr(vBB)}, 0x3f80')
    a('s_waitcnt vmcnt(0) lgkmcnt(0)')
    a(f'v_mov_b32 {vr(vBA0)}, {vr(vB0)}\nv_mov_b32 {vr(vBA1)}, {vr(vB1)}')
    stamp(a,2)
    a('s_barrier')
    lP=L('p1')
    a(f's_cmp_lg_u32 {sr(sPROD)}, 0\ns_cbranch_scc0 {lP}')
    a('s_setprio 2')
    vx=2; vw=3; FX=96; FK=104; FV=112; DK=120; DV=124
    a(f'v_and_b32 v4, 15, {vr(vL)}\ns_lshl_b32 {sr(sT)}, {sr(sU)}, 4\nv_add_u32 v5, {sr(sT)}, v4\nv_mul_u32_u24 {vr(vx)}, {XS}, v5\nv_lshrrev_b32 v5, 4, {vr(vL)}\nv_lshl_add_u32 {vr(vx)}, v5, 4, {vr(vx)}')
    a(f'v_lshrrev_b32 v6, 2, v4\nv_lshl_add_u32 v6, v5, 3, v6\nv_lshlrev_b32 v6, 5, v6\nv_and_b32 v7, 3, v4\nv_lshl_add_u32 v6, v7, 3, v6\nv_add_u32 {vr(vw)}, {slot(4)}, v6')
    def kvread(s):
        p=s%2
        a(f'ds_read_b128 {vr(FX+4*p,4)}, {vr(vx)} offset:{s*64}')
        a(f'ds_read_b64_tr_b16 {vr(FK+4*p,2)}, {vr(vw)} offset:{s*1024}\nds_read_b64_tr_b16 {vr(FK+4*p+2,2)}, {vr(vw)} offset:{s*1024+128}')
        a(f'ds_read_b64_tr_b16 {vr(FV+4*p,2)}, {vr(vw)} offset:{16384+s*1024}\nds_read_b64_tr_b16 {vr(FV+4*p+2,2)}, {vr(vw)} offset:{16384+s*1024+128}')
    kvread(0)
    for s in range(16):
        p=s%2
        if s<15:
            kvread(s+1); a('s_waitcnt lgkmcnt(5)')
        else: a('s_waitcnt lgkmcnt(0)')
        a(MF16(DK,FK+4*p,FX+4*p,'0' if s==0 else None)); a(MF16(DV,FX+4*p,FV+4*p,'0' if s==0 else None))
    a(f'v_mov_b32 v8, 1\nv_mov_b32 v9, {C_S0}\ns_mov_b64 exec, 1\nds_add_u32 v9, v8\ns_mov_b64 exec, -1')
    a(f'v_mov_b32 v12, 0\nv_mov_b32 v13, 0\nv_mov_b32 v14, 0\nv_mov_b32 v15, 0')
    a(f'v_and_b32 v10, 7, {vr(vL)}\nv_lshlrev_b32 v10, 7, v10\nv_bfe_u32 v11, {vr(vL)}, 3, 1\nv_lshl_add_u32 v10, v11, 16, v10')
    assert WS_F3-WS_F2==0x10000
    a(f's_lshl_b32 {sr(sT)}, {sr(sRB)}, 10\ns_add_u32 {sr(sT)}, {sr(sT)}, {WS_F2}\ns_mov_b64 exec, 0xffff\nbuffer_store_dwordx4 v[12:15], v10, {sr(R_WS,4)}, {sr(sT)} offen sc1\ns_mov_b64 exec, -1')
    a(f'v_cvt_pk_bf16_f32 v16, {vr(DK)}, {vr(DK+1)}\nv_cvt_pk_bf16_f32 v17, {vr(DK+2)}, {vr(DK+3)}\nv_cvt_pk_bf16_f32 v18, {vr(DV)}, {vr(DV+1)}\nv_cvt_pk_bf16_f32 v19, {vr(DV+2)}, {vr(DV+3)}')
    a(f's_lshl_b32 {sr(sT)}, {sr(sRB)}, 12\ns_lshr_b32 {sr(sT2)}, {sr(sU)}, 1\ns_lshl_b32 {sr(sT2)}, {sr(sT2)}, 11\ns_add_u32 {sr(sT)}, {sr(sT)}, {sr(sT2)}')
    a(f's_and_b32 {sr(sT2)}, {sr(sU)}, 1\ns_lshl_b32 {sr(sT3)}, {sr(sT2)}, 8\ns_add_u32 {sr(sT3)}, {sr(sT3)}, {sr(sT)}')
    a(f's_lshl_b32 {sr(sT2)}, {sr(sT2)}, 9\ns_add_u32 {sr(sT2)}, {sr(sT2)}, {sr(sT)}')
    a(f'v_lshlrev_b32 v20, 4, v4\nv_and_b32 v21, 1, v5\nv_lshrrev_b32 v22, 1, v5')
    a(f'v_lshl_add_u32 v23, v21, 9, v20\nv_lshl_add_u32 v23, v22, 3, v23')
    a(f'v_lshl_add_u32 v24, v22, 8, v20\nv_lshl_add_u32 v24, v21, 3, v24')
    a(f'buffer_store_dwordx2 v[16:17], v23, {sr(R_WS,4)}, {sr(sT3)} offen sc1\nbuffer_store_dwordx2 v[18:19], v24, {sr(R_WS,4)}, {sr(sT2)} offen offset:1024 sc1')
    a(f'v_mul_f32 v25, {vr(DK)}, {vr(DK)}\nv_fma_f32 v25, {vr(DK+1)}, {vr(DK+1)}, v25\nv_fma_f32 v25, {vr(DK+2)}, {vr(DK+2)}, v25\nv_fma_f32 v25, {vr(DK+3)}, {vr(DK+3)}, v25')
    a(f'v_max3_f32 v27, abs({vr(DV)}), abs({vr(DV+1)}), abs({vr(DV+2)})\nv_max_f32 v27, abs({vr(DV+3)}), v27')
    a('v_mov_b32 v26, v25\ns_nop 1\nv_permlane32_swap_b32 v25, v26\ns_nop 1\nv_add_f32 v25, v25, v26\nv_mov_b32 v26, v25\ns_nop 1\nv_permlane16_swap_b32 v25, v26\ns_nop 1\nv_add_f32 v25, v25, v26')
    a(f'v_mov_b32 v28, 0x7f000000\nv_cmp_lt_f32 vcc, {hx(2.0**20)}, v27\ns_nop 1\nv_cndmask_b32 v25, v25, v28, vcc')
    a(f'v_mov_b32 v9, {C_KMAX}\nds_max_u32 v9, v25')
    a('s_waitcnt vmcnt(0) lgkmcnt(0)')
    a(f'v_mov_b32 v9, {C_KV}\ns_mov_b64 exec, 1\nds_add_rtn_u32 v10, v9, v8\ns_waitcnt lgkmcnt(0)\nv_readfirstlane_b32 {sr(sT)}, v10\ns_mov_b64 exec, -1')
    l=L('notlast')
    a(f's_cmp_eq_u32 {sr(sT)}, 3\ns_cbranch_scc0 {l}')
    a(f'v_mov_b32 v9, {C_KMAX}\nds_read_b32 v10, v9\ns_lshl_b32 {sr(sT)}, {sr(sRB)}, 3\nv_mov_b32 v11, {sr(sT)}\ns_waitcnt lgkmcnt(0)\nv_or_b32 v10, 1, v10')
    a(f's_mov_b64 exec, 1\nbuffer_store_dword v10, v11, {sr(R_DBG,4)}, 0 offen sc1\ns_mov_b64 exec, -1')
    a(f'{l}:')
    stamp(a,3)
    a(f'v_mov_b32 v9, {C_S0}')
    ldspoll(a,10,9,0,4)
    for c in range(10):
        x=dma(a,(sSLOT,c*1024),vWD,R_WA,sr(sWOFF)); a('s_nop 0'); a(x); a(f's_add_u32 {sr(sWOFF)}, {sr(sWOFF)}, {sr(sWSTEP)}')
    a('s_setprio 0')
    a(f'{lP}:')
    ACC=128
    FR=64
    def p1read(s):
        f=FR+16*(s%2); o=(s%5)*2048
        return [f'ds_read_b128 {vr(f,4)}, {vr(vXA)} offset:{s*32}',
                f'ds_read_b64_tr_b16 {vr(f+8,2)}, {vr(vW0)} offset:{o}',f'ds_read_b64_tr_b16 {vr(f+10,2)}, {vr(vW0)} offset:{o+512}',
                f'ds_read_b128 {vr(f+4,4)}, {vr(vXA)} offset:{s*32+32*XS}',
                f'ds_read_b64_tr_b16 {vr(f+12,2)}, {vr(vW1)} offset:{o}',f'ds_read_b64_tr_b16 {vr(f+14,2)}, {vr(vW1)} offset:{o+512}']
    a('s_waitcnt vmcnt(8)')
    for x in p1read(0): a(x)
    for mt in range(2):
        for t in range(2): a(MF(ACC+16*(2*mt+t),(vBA0,vBA1)[t],vBB,'0'))
    a('s_waitcnt lgkmcnt(0)')
    for s in range(16):
        f=FR+16*(s%2)
        mf=[MF(ACC+16*(2*mt+t),f+8+4*t,f+4*mt) for mt in range(2) for t in range(2)]
        rd=p1read(s+1) if s<15 else []
        if s<15: a(f's_waitcnt vmcnt({min(6,2*(14-s))})')
        a(mf[0])
        for x in rd[:3]: a(x)
        a(mf[1])
        for x in rd[3:]: a(x)
        a(mf[2])
        if s+5<16:
            for c in range(2):
                x=dma(a,(sSLOT,(s%5)*2048+c*1024),vWD,R_WA,sr(sWOFF)); a('s_nop 0' if c==0 else mf[3]); a(x); a(f's_add_u32 {sr(sWOFF)}, {sr(sWOFF)}, {sr(sWSTEP)}')
        else: a(mf[3])
        if s<15: a('s_waitcnt lgkmcnt(0)')
    stamp(a,4)
    vLA=40
    a(f'v_lshlrev_b32 {vr(vLA)}, 4, {vr(vL)}\nv_add_u32 v41, {sr(sSLOT)}, {vr(vLA)}\nv_add_u32 v42, {sr(sPSLOT)}, {vr(vLA)}')
    lg=L('gx'); lx=L('xdone')
    a(f's_cmp_eq_u32 {sr(sKH)}, 0\ns_cbranch_scc0 {lg}')
    a.nop(8)
    for i in range(8): a(f'ds_write_b128 v41, {vr(ACC+32+4*i,4)} offset:{1024*i}')
    a(f's_branch {lx}\n{lg}:')
    a.nop(8)
    for i in range(8): a(f'ds_write_b128 v41, {vr(ACC+4*i,4)} offset:{1024*i}')
    for i in range(16): a(f'v_mov_b64 {vr(ACC+2*i,2)}, {vr(ACC+32+2*i,2)}')
    a(f'{lx}:')
    CST=44
    a(f'v_mov_b32 {vr(CST)}, {hx(GC1)}\nv_mov_b32 {vr(CST+1)}, {hx(GC1)}\nv_mov_b32 {vr(CST+2)}, {hx(GC2)}\nv_mov_b32 {vr(CST+3)}, {hx(GC2)}\nv_mov_b32 {vr(CST+4)}, 1.0\nv_mov_b32 {vr(CST+5)}, 1.0')
    a('s_waitcnt lgkmcnt(0)\ns_barrier')
    PT=64
    for i in range(8): a(f'ds_read_b128 {vr(PT+4*i,4)}, v42 offset:{1024*i}')
    for i in range(8):
        a(f's_waitcnt lgkmcnt({7-i})')
        a(f'v_pk_add_f32 {vr(ACC+4*i,2)}, {vr(ACC+4*i,2)}, {vr(PT+4*i,2)}\nv_pk_add_f32 {vr(ACC+4*i+2,2)}, {vr(ACC+4*i+2,2)}, {vr(PT+4*i+2,2)}')
    lq=L('qepi'); le=L('epidone')
    a(f's_cmp_eq_u32 {sr(sU)}, 0\ns_cbranch_scc1 {lq}')
    gelu(a,ACC,32,PT,CST,True)
    a(f's_branch {le}\n{lq}:')
    QS=0.25*math.log2(math.e)
    a(f'v_mov_b32 v50, {hx(QS)}\nv_mov_b32 v51, {hx(QS)}')
    for i in range(16): a(f'v_pk_mul_f32 {vr(ACC+2*i,2)}, {vr(ACC+2*i,2)}, v[50:51]')
    for hq in range(4):
        a(f'v_pk_mul_f32 {vr(PT+2*hq,2)}, {vr(ACC+8*hq,2)}, {vr(ACC+8*hq,2)}')
    for i in range(1,4):
        for hq in range(4): a(f'v_pk_fma_f32 {vr(PT+2*hq,2)}, {vr(ACC+8*hq+2*i,2)}, {vr(ACC+8*hq+2*i,2)}, {vr(PT+2*hq,2)}')
    for hq in range(4): a(f'v_add_f32 {vr(PT+2*hq)}, {vr(PT+2*hq)}, {vr(PT+2*hq+1)}')
    for hq in range(4): a(f'v_mov_b32 {vr(PT+2*hq+1)}, {vr(PT+2*hq)}')
    a.nop(1)
    for hq in range(4): a(f'v_permlane32_swap_b32 {vr(PT+2*hq)}, {vr(PT+2*hq+1)}')
    a.nop(1)
    for hq in range(4): a(f'v_add_f32 {vr(PT+2*hq)}, {vr(PT+2*hq)}, {vr(PT+2*hq+1)}')
    a(f'v_max3_f32 {vr(PT)}, {vr(PT)}, {vr(PT+2)}, {vr(PT+4)}\nv_max_f32 {vr(PT)}, {vr(PT)}, {vr(PT+6)}\nv_mov_b32 v52, {C_QMAX}\nds_max_u32 v52, {vr(PT)}')
    a(f'{le}:')
    pack(a,PT+16,ACC,32)
    for i in range(4): a(f'ds_write_b128 v42, {vr(PT+16+4*i,4)} offset:{1024*i}')
    stamp(a,5)
    a(f's_cmp_eq_u32 {sr(sKH)}, 0\ns_cbranch_scc0 LG')
    attention(a)
    a('LG:')
    gwaves(a)
    a('LEND:')
    return a

O=0; Q=128; KV=160; SB=208; IDX=240; VK=241; VV=242
def kvload(kb):
    b=KV+12*kb
    return [f'buffer_load_dwordx4 {vr(b,4)}, {vr(VK)}, {sr(R_WS,4)}, {sr(sKVO)} offen sc1',
            f's_mov_b64 exec, {sr(sEX,2)}',
            f'buffer_load_dwordx4 {vr(b+4,4)}, {vr(VV)}, {sr(R_WS,4)}, {sr(sKVO)} offen offset:1024 sc1',
            f'buffer_load_dwordx4 {vr(b+8,4)}, {vr(VV)}, {sr(R_WS,4)}, {sr(sKVO)} offen offset:1536 sc1',
            's_mov_b64 exec, -1', f's_add_u32 {sr(sKVO)}, {sr(sKVO)}, 0x800']
def attention(a):
    a('s_setprio 1')
    a(f'v_mov_b32 {vr(IDX)}, 0xdddddddd\nv_lshlrev_b32 {vr(VK)}, 4, {vr(vL)}')
    a(f'v_and_b32 {vr(VV)}, 15, {vr(vL)}\nv_lshrrev_b32 v243, 5, {vr(vL)}\nv_lshl_add_u32 {vr(VV)}, v243, 4, {vr(VV)}\nv_lshlrev_b32 {vr(VV)}, 4, {vr(VV)}')
    a(f's_mov_b32 {sr(sEX)}, 0xffff\ns_mov_b32 {sr(sEX+1)}, 0xffff\ns_lshl_b32 {sr(sKVO)}, {sr(sW)}, 15')
    a(f'v_and_b32 v243, 27, {vr(vL)}\nv_cmp_eq_u32 vcc, 16, v243\nv_mov_b32 v244, 0x3f803f80\ns_nop 0\nv_cndmask_b32 v243, 0, v244, vcc')
    for kb in range(4):
        for r in range(4,12): a(f'v_mov_b32 {vr(KV+12*kb+r)}, v243')
    a('s_waitcnt lgkmcnt(0)\ns_barrier')
    a(f'v_add_u32 v245, {slot(4)}, {vr(VK)}\nv_add_u32 v246, {slot(0)}, {vr(VK)}\nv_mov_b32 v247, {C_QMAX}')
    for i in range(8):
        hq,mt=i//2,i%2
        a(f'ds_read_b128 {vr(Q+4*i,4)}, {vr(245+mt)} offset:{1024*hq}')
    a('ds_read_b32 v248, v247')
    a(f'v_lshlrev_b32 v249, 3, {vr(vL)}')
    poll(a,250,249,R_DBG,'0',32)
    stamp(a,6)
    for kb in range(3):
        for x in kvload(kb): a(x)
    for i in range(8):
        for r in range(0,10,2): a(f'v_mov_b64 {vr(O+16*i+r,2)}, 0')
    for r in range(0,16,2): a(f'v_mov_b64 {vr(SB+16+r,2)}, 0')
    a('s_mov_b32 exec_lo, -1\ns_mov_b32 exec_hi, 0')
    for dpp in ('row_shr:1','row_shr:2','row_shr:4','row_shr:8'):
        a(f's_nop 1\nv_max_u32_dpp v250, v250, v250 {dpp} row_mask:0xf bank_mask:0xf')
    a(f's_nop 1\nv_readlane_b32 {sr(sT)}, v250, 15\nv_readlane_b32 {sr(sT2)}, v250, 31\ns_mov_b64 exec, -1\ns_max_u32 {sr(sT)}, {sr(sT)}, {sr(sT2)}')
    a(f's_waitcnt lgkmcnt(0)\nv_mul_f32 v248, {sr(sT)}, v248\nv_cmp_nge_f32 vcc, {hx(88.0**2)}, v248')
    if cfg.force_slow: a('s_branch LSLOW')
    a('s_cbranch_vccnz LSLOW')
    a('s_waitcnt vmcnt(6)')
    a(MF(SB,KV,Q,'0'))
    a(f's_mov_b32 {sr(sCNT)}, 4')
    a.nop(10)
    a('.p2align 6\nLATT:')
    for kt in range(4):
        kvc=KV+12*kt; kvn=KV+12*((kt+1)%4); kvp=KV+12*((kt+3)%4)
        for q in range(8):
            i=kt*8+q
            cur=SB+16*(i%2); oth=SB+16*((i+1)%2)
            pq=(q-1)%8; pkv=kvc if q>0 else kvp
            nq=(q+1)%8; nkv=kvc if q<7 else kvn
            e=[f'v_exp_f32 {vr(cur+r)}, {vr(cur+r)}' for r in range(16)]
            ld=[]
            if q==1: ld=kvload((kt+3)%4)
            if q==6: ld=['s_waitcnt vmcnt(6)', f's_sub_u32 {sr(sCNT)}, {sr(sCNT)}, 1' if kt==3 else 's_nop 0']
            seq=[SM(O+16*pq,pkv+4,oth,IDX)]+e[0:4]+[SM(O+16*pq,pkv+8,oth+8,IDX)]+e[4:10]+[MF(oth,nkv,Q+4*nq,'0')]
            if q==1: seq+=[ld[0],e[10]]+ld[1:5]+[e[11],ld[5]]+e[12:]
            else: seq+=ld+e[10:]
            for x in seq: a(x)
    a(f's_cmp_lg_u32 {sr(sCNT)}, 0\ns_cbranch_scc1 LATT')
    a('s_nop 0')
    a(SM(O+16*7,KV+36+4,SB+16,IDX)); a(SM(O+16*7,KV+36+8,SB+24,IDX))
    a('LCOMB:')
    stamp(a,7)
    a('s_waitcnt vmcnt(0)\ns_barrier')
    CB=slot(0)
    TS=2304
    a(f'v_lshlrev_b32 v243, 2, {vr(vL)}')
    for d in range(4):
        l=L('cw')
        a(f's_cmp_eq_u32 {sr(sW)}, {d}\ns_cbranch_scc1 {l}')
        a(f's_sub_u32 {sr(sT)}, {sr(sW)}, {d+1}\ns_and_b32 {sr(sT)}, {sr(sT)}, 3\ns_mul_i32 {sr(sT)}, {sr(sT)}, {2*TS}\ns_add_u32 {sr(sT)}, {sr(sT)}, {CB+d*6*TS}')
        a(f'v_add_u32 v244, {sr(sT)}, {vr(VK)}\nv_add_u32 v245, {sr(sT)}, v243')
        for mt in range(2):
            o=O+16*(2*d+mt)
            a(f'ds_write_b128 v244, {vr(o,4)} offset:{mt*TS}\nds_write_b128 v244, {vr(o+4,4)} offset:{mt*TS+1024}\nds_write_b32 v245, {vr(o+8)} offset:{mt*TS+2048}')
        a(f'{l}:')
    R=128
    for d in range(4):
        l=L('cm')
        a(f's_cmp_eq_u32 {sr(sW)}, {d}\ns_cbranch_scc0 {l}')
        for mt in range(2):
            for r in range(0,10,2): a(f'v_mov_b64 {vr(R+10*mt+r,2)}, {vr(O+16*(2*d+mt)+r,2)}')
        a(f'{l}:')
    a(f's_mul_i32 {sr(sT)}, {sr(sW)}, {6*TS}\ns_add_u32 {sr(sT)}, {sr(sT)}, {CB}\nv_add_u32 v244, {sr(sT)}, {vr(VK)}\nv_add_u32 v245, {sr(sT)}, v243')
    a('s_waitcnt lgkmcnt(0)\ns_barrier')
    T=160
    for k in range(3):
        for mt in range(2):
            b=T+10*(2*k+mt); o=(2*k+mt)*TS
            a(f'ds_read_b128 {vr(b,4)}, v244 offset:{o}\nds_read_b128 {vr(b+4,4)}, v244 offset:{o+1024}\nds_read_b32 {vr(b+8)}, v245 offset:{o+2048}')
    for k in range(3):
        for mt in range(2):
            b=T+10*(2*k+mt)
            a(f's_waitcnt lgkmcnt({min(15,3*(5-2*k-mt))})')
            for r in range(0,8,2): a(f'v_pk_add_f32 {vr(R+10*mt+r,2)}, {vr(R+10*mt+r,2)}, {vr(b+r,2)}')
            a(f'v_add_f32 {vr(R+10*mt+8)}, {vr(R+10*mt+8)}, {vr(b+8)}')
    a(f'v_rcp_f32 {vr(R+8)}, {vr(R+8)}\nv_rcp_f32 {vr(R+18)}, {vr(R+18)}')
    a(f's_lshl_b32 {sr(sT)}, {sr(sRB)}, 5\ns_lshl_b32 {sr(sT2)}, {sr(sJ)}, 2\ns_add_u32 {sr(sT)}, {sr(sT)}, {sr(sT2)}\ns_add_u32 {sr(sT)}, {sr(sT)}, {sr(sW)}\ns_lshl_b32 {sr(sT)}, {sr(sT)}, 11\ns_add_u32 {sr(sT)}, {sr(sT)}, {WS_O}')
    a(f'v_mov_b32 {vr(R+9)}, {vr(R+8)}\nv_mov_b32 {vr(R+19)}, {vr(R+18)}')
    for mt in range(2):
        for r in range(0,8,2): a(f'v_pk_mul_f32 {vr(R+10*mt+r,2)}, {vr(R+10*mt+r,2)}, {vr(R+10*mt+8,2)}')
        pack(a,T+4*mt,R+10*mt,8)
        a(f'buffer_store_dwordx4 {vr(T+4*mt,4)}, {vr(VK)}, {sr(R_WS,4)}, {sr(sT)} offen offset:{1024*mt} sc1')
    a(f's_lshl_b32 {sr(sT)}, {sr(sRB)}, 3\ns_add_u32 {sr(sT)}, {sr(sT)}, {sr(sJ)}\ns_lshl_b32 {sr(sT)}, {sr(sT)}, 7\ns_lshl_b32 {sr(sT2)}, {sr(sW)}, 2\ns_add_u32 {sr(sT)}, {sr(sT)}, {sr(sT2)}\ns_add_u32 {sr(sT)}, {sr(sT)}, {WS_F3}')
    a(f'v_mov_b32 v243, 1\nv_mov_b32 v244, 0\ns_waitcnt vmcnt(0)\ns_mov_b64 exec, 1\nbuffer_store_dword v243, v244, {sr(R_WS,4)}, {sr(sT)} offen sc1\ns_mov_b64 exec, -1')
    stamp(a,8)
    dump_stamps(a)
    a('s_endpgm')
    slowpath(a)
def slowpath(a):
    MX=160+12
    MX=232
    a('LSLOW:')
    a(f'v_mov_b32 v247, 1\nv_mov_b32 v246, {C_S1}\ns_waitcnt vmcnt(0)\ns_mov_b64 exec, 1\nds_add_u32 v246, v247\ns_mov_b64 exec, -1')
    for i in range(8): a(f'v_mov_b32 {vr(MX+i)}, 0xff800000')
    a(f's_lshl_b32 {sr(sKVO)}, {sr(sW)}, 15\ns_mov_b32 {sr(sT3)}, 16\nLS1:')
    a(f'buffer_load_dwordx4 {vr(KV,4)}, {vr(VK)}, {sr(R_WS,4)}, {sr(sKVO)} offen sc1\ns_add_u32 {sr(sKVO)}, {sr(sKVO)}, 0x800\ns_waitcnt vmcnt(0)')
    for q in range(8):
        a(MF(SB,KV,Q+4*q,'0')); a.nop(14)
        for r in range(0,16,2): a(f'v_max3_f32 {vr(MX+q)}, {vr(SB+r)}, {vr(SB+r+1)}, {vr(MX+q)}')
    a(f's_sub_u32 {sr(sT3)}, {sr(sT3)}, 1\ns_cmp_lg_u32 {sr(sT3)}, 0\ns_cbranch_scc1 LS1')
    ldspoll(a,245,246,0,4)
    a(f'v_lshlrev_b32 v243, 2, {vr(vL)}\ns_lshl_b32 {sr(sT)}, {sr(sW)}, 11\ns_and_b32 {sr(sT2)}, {sr(sT)}, 0x800\ns_lshr_b32 {sr(sT)}, {sr(sW)}, 1\ns_mul_i32 {sr(sT)}, {sr(sT)}, {4*SLOTSZ}')
    a(f's_add_u32 {sr(sT)}, {sr(sT)}, {sr(sT2)}\ns_add_u32 {sr(sT)}, {sr(sT)}, {slot(0)}\nv_add_u32 v244, {sr(sT)}, v243')
    for q in range(8): a(f'ds_write_b32 v244, {vr(MX+q)} offset:{256*q}')
    a(f's_waitcnt lgkmcnt(0)\ns_mov_b64 exec, 1\nds_add_u32 v246, v247\ns_mov_b64 exec, -1')
    ldspoll(a,245,246,0,8)
    a(f'v_and_b32 v243, 31, {vr(vL)}\nv_lshlrev_b32 v243, 2, v243\nv_add_u32 v243, {slot(0)}, v243')
    for w in range(4):
        for h in range(2):
            for q in range(8): a(f'ds_read_b32 {vr(SB+q)}, v243 offset:{(w//2)*4*SLOTSZ+(w%2)*2048+256*q+128*h}')
            a('s_waitcnt lgkmcnt(0)')
            for q in range(8): a(f'v_max_f32 {vr(MX+q)}, {vr(MX+q)}, {vr(SB+q)}')
    a(f's_lshl_b32 {sr(sKVO)}, {sr(sW)}, 15\ns_mov_b32 {sr(sT3)}, 16\nLS2:')
    for x in kvload(0): a(x)
    a('s_waitcnt vmcnt(0)')
    for q in range(8):
        a(MF(SB,KV,Q+4*q,'0')); a.nop(14)
        for r in range(16): a(f'v_sub_f32 {vr(SB+r)}, {vr(SB+r)}, {vr(MX+q)}')
        for r in range(16): a(f'v_exp_f32 {vr(SB+r)}, {vr(SB+r)}')
        a.nop(2)
        a(SM(O+16*q,KV+4,SB,IDX)); a(SM(O+16*q,KV+8,SB+8,IDX))
    a.nop(14)
    a(f's_sub_u32 {sr(sT3)}, {sr(sT3)}, 1\ns_cmp_lg_u32 {sr(sT3)}, 0\ns_cbranch_scc1 LS2')
    a('s_branch LCOMB')

def gwaves(a):
    ACC=0; FR=128
    vH0=180; vH1=181; vA0=182; vA1=183; vD=184; vH3=185; vXA=186; vW3=187; vW3D=188; vLA=189
    CST=190
    sW2=sWOFF; sR=sSLOT
    srd(a,R_T0,P_W2,1792*1024); srd(a,R_T1,P_W1,512*3584)
    a(f'v_lshlrev_b32 {vr(vLA)}, 4, {vr(vL)}')
    a(f'v_add_u32 {vr(vH0)}, {slot(4)}, {vr(vLA)}\nv_add_u32 {vr(vH1)}, {slot(0)}, {vr(vLA)}\nv_add_u32 {vr(vH3)}, {H3OFF}, {vr(vLA)}')
    tr_addr(a,vA0,2,3,'h4',128,True)
    a(f'v_mov_b32 v200, {vr(vA0)}')
    a(f'v_add_u32 {vr(vA0)}, {sr(sPSLOT)}, {vr(vA0)}\nv_xor_b32 {vr(vA1)}, 64, {vr(vA0)}')
    a(f's_mov_b32 {sr(sT2)}, 1024'); line_voff(a,vD,2,3,sr(sT2))
    def ringoff(i):
        return (4*SLOTSZ+4096+i*1024) if i<6 else (4096+(i-6)*1024)
    def w2dma(ks):
        out=[]
        for c in range(4):
            i=(ks%3)*4+c
            out.append([f's_add_u32 m0, {sr(sPSLOT)}, {ringoff(i)}', f's_add_u32 {sr(sT)}, {sr(sW2)}, {(c%2)*8192+(c//2)*128}', f'buffer_load_dwordx4 {vr(vD)}, {sr(R_T0,4)}, {sr(sT)} offen lds'])
        adv=[f's_add_u32 {sr(sW2)}, {sr(sW2)}, 16384'] if ks!=11 else [f's_lshl_b32 {sr(sW2)}, {sr(sC3)}, 10', f's_lshl_b32 {sr(sT)}, {sr(sU)}, 8', f's_add_u32 {sr(sW2)}, {sr(sW2)}, {sr(sT)}']
        return out,adv
    def w2fill():
        for ks in range(3):
            d,adv=w2dma(ks)
            for x in d:
                for y in x: a(y)
            for y in adv: a(y)
    a(f's_lshl_b32 {sr(sW2)}, {sr(sC0)}, 10\ns_lshl_b32 {sr(sT)}, {sr(sU)}, 8\ns_add_u32 {sr(sW2)}, {sr(sW2)}, {sr(sT)}')
    lN=L('gN'); lF=L('ffn2')
    a(f's_cmp_eq_u32 {sr(sU)}, 0\ns_cbranch_scc0 {lN}')
    s3=sWSTEP
    a(f'v_lshrrev_b32 v2, 2, {vr(vL)}\nv_mul_u32_u24 {vr(vW3D)}, 3584, v2\nv_and_b32 v3, 3, {vr(vL)}\nv_lshl_add_u32 {vr(vW3D)}, v3, 4, {vr(vW3D)}')
    a(f's_lshl_b32 {sr(s3)}, {sr(sC3)}, 1')
    a(f'v_lshrrev_b32 v2, 5, {vr(vL)}\nv_lshlrev_b32 v2, 20, v2\nv_lshl_add_u32 v2, {vr(vL)}, 1, v2')
    a(f'buffer_load_ushort v40, v2, {sr(R_B,4)}, {sr(s3)} offen')
    def w3dma(s): return [f's_mov_b32 m0, {R3OFF+(s%8)*1024}', 's_nop 0', f'buffer_load_dwordx4 {vr(vW3D)}, {sr(R_T1,4)}, {sr(s3)} offen lds', f's_add_u32 {sr(s3)}, {sr(s3)}, {16*3584}']
    for s in range(8):
        for y in w3dma(s): a(y)
    tr_addr(a,vW3,2,3,'h8',64,False)
    a(f'v_add_u32 {vr(vW3)}, {R3OFF}, {vr(vW3)}')
    a(f'v_and_b32 v2, 31, {vr(vL)}\nv_mul_u32_u24 {vr(vXA)}, {XS}, v2\nv_lshrrev_b32 v2, 5, {vr(vL)}\nv_lshl_add_u32 {vr(vXA)}, v2, 4, {vr(vXA)}')
    for r in (41,42,43,45,46,47): a(f'v_mov_b32 {vr(r)}, 0')
    a('v_mov_b32 v44, 0x3f80')
    def r3(s):
        f=FR+12*(s%2); o=(s%8)*1024
        return [f'ds_read_b128 {vr(f,4)}, {vr(vXA)} offset:{s*32}',f'ds_read_b64_tr_b16 {vr(f+8,2)}, {vr(vW3)} offset:{o}',f'ds_read_b64_tr_b16 {vr(f+10,2)}, {vr(vW3)} offset:{o+256}',f'ds_read_b128 {vr(f+4,4)}, {vr(vXA)} offset:{s*32+32*XS}']
    a('s_waitcnt vmcnt(7)')
    for x in r3(0): a(x)
    a(MF(0,40,44,'0')); a(MF(16,40,44,'0'))
    a('s_waitcnt lgkmcnt(0)')
    assert cfg.b3pos<24
    for s in range(32):
        f=FR+12*(s%2)
        if s<31: a(f's_waitcnt vmcnt({(min(s+7,31)-(s+1))+(12 if s>=25 else 0)})')
        a(MF(0,f+8,f))
        if s<31:
            for x in r3(s+1): a(x)
        a(MF(16,f+8,f+4))
        if s+8<32:
            for y in w3dma(s+8): a(y)
        if s==24: w2fill()
        if s<31: a('s_waitcnt lgkmcnt(0)')
        if s==cfg.b3pos: a('s_barrier')
    a(f'v_mov_b32 {vr(CST)}, {hx(GC1)}\nv_mov_b32 {vr(CST+2)}, {hx(GC2)}')
    a.nop(10)
    gelu(a,0,32,32,CST,False)
    pack(a,32,0,32)
    for i in range(4): a(f'ds_write_b128 {vr(vH3)}, {vr(32+4*i,4)} offset:{1024*i}')
    a(f'v_mov_b32 v2, {C_H3}\nv_mov_b32 v3, 1\ns_waitcnt lgkmcnt(0)\nds_write_b32 v2, v3')
    a(f's_branch {lF}\n{lN}:')
    a('s_waitcnt lgkmcnt(0)\ns_barrier')
    w2fill()
    a(f'{lF}:')
    stamp(a,6)
    def r2(ks):
        f=FR+24*(ks%2); out=[]
        if ks<12:
            ft=ks//2; u=1+ft//2; o=u*SLOTSZ+((ft%2)*2+ks%2)*1024
            out+=[f'ds_read_b128 {vr(f,4)}, {vr(vH0)} offset:{o}', f'ds_read_b128 {vr(f+4,4)}, {vr(vH1)} offset:{o}']
        else:
            out+=[f'ds_read_b128 {vr(f,4)}, {vr(vH3)} offset:{(ks%2)*1024}', f'ds_read_b128 {vr(f+4,4)}, {vr(vH3)} offset:{2048+(ks%2)*1024}']
        for t in range(4):
            o=ringoff((ks%3)*4+(t//2)*2); va=(vA0,vA1)[t%2]
            out+=[f'ds_read_b64_tr_b16 {vr(f+8+4*t,2)}, {vr(va)} offset:{o}', f'ds_read_b64_tr_b16 {vr(f+10+4*t,2)}, {vr(va)} offset:{o+1024}']
        return out
    a('s_waitcnt vmcnt(8)')
    for x in r2(0): a(x)
    a('s_waitcnt lgkmcnt(0)')
    for ks in range(14):
        f=FR+24*(ks%2)
        mf=[MF(ACC+16*(2*t+mt),f+8+4*t,f+4*mt,'0' if ks==0 else None) for t in range(4) for mt in range(2)]
        if ks==11:
            a(f'v_mov_b32 v202, {C_H3}'); ldspoll(a,203,202,0,1)
        if ks<13: a(f's_waitcnt vmcnt({4 if ks<12 else 0})')
        rd=r2(ks+1) if ks<13 else []
        d,adv=w2dma(ks+3) if ks+3<14 else ([],[])
        for i in range(8):
            a(mf[i])
            for x in rd[2*i:2*i+2]: a(x)
            if i>=4 and d:
                for y in d[i-4]: a(y)
        for y in adv: a(y)
        if ks<13: a('s_waitcnt lgkmcnt(0)')
    stamp(a,7)
    srd(a,R_T1,P_WO,512*1024)
    a(f's_lshl_b32 {sr(sW2)}, {sr(sU)}, 17\ns_lshl_b32 {sr(sT)}, {sr(sJ)}, 7\ns_add_u32 {sr(sW2)}, {sr(sW2)}, {sr(sT)}\ns_lshl_b32 {sr(sT2)}, {sr(sU)}, 14')
    for c in range(16):
        a(f's_add_u32 m0, {sr(sT2)}, {c*1024}\ns_nop 0\nbuffer_load_dwordx4 {vr(vD)}, {sr(R_T1,4)}, {sr(sW2)} offen lds\ns_add_u32 {sr(sW2)}, {sr(sW2)}, 8192')
    a(f's_lshl_b32 {sr(sT)}, {sr(sRB)}, 3\ns_lshl_b32 {sr(sT2)}, {sr(sU)}, 1\ns_add_u32 {sr(sT)}, {sr(sT)}, {sr(sT2)}\ns_lshl_b32 {sr(sT)}, {sr(sT)}, 3\ns_add_u32 {sr(sT)}, {sr(sT)}, {sr(sJ)}\ns_lshl_b32 {sr(sT)}, {sr(sT)}, 13\ns_add_u32 {sr(sT)}, {sr(sT)}, {WS_P}')
    for t4 in range(4):
        for mt in range(2):
            i=2*t4+mt; p=FR+8*(i%4)
            pack(a,p,ACC+16*i,16)
            if mt==0: a(f's_add_u32 {sr(sT2)}, {sr(sT)}, {(t4//2)*65536+(t4%2)*4096}')
            a(f'buffer_store_dwordx4 {vr(p,4)}, {vr(vLA)}, {sr(R_WS,4)}, {sr(sT2)} offen offset:{mt*2048} sc1\nbuffer_store_dwordx4 {vr(p+4,4)}, {vr(vLA)}, {sr(R_WS,4)}, {sr(sT2)} offen offset:{mt*2048+1024} sc1')
    a(f's_lshl_b32 {sr(sT)}, {sr(sRB)}, 3\nv_mov_b32 v2, {sr(sT)}')
    poll(a,3,2,R_DBG,'0',1)
    a(f's_lshl_b32 {sr(sT)}, {sr(sRB)}, 3\ns_add_u32 {sr(sT)}, {sr(sT)}, {sr(sJ)}\ns_lshl_b32 {sr(sT)}, {sr(sT)}, 7\ns_lshl_b32 {sr(sT2)}, {sr(sU)}, 2\ns_add_u32 {sr(sT)}, {sr(sT)}, {sr(sT2)}\ns_add_u32 {sr(sT)}, {sr(sT)}, {WS_F2}')
    a(f'v_mov_b32 v2, 1\nv_mov_b32 v3, 0\ns_mov_b64 exec, 1\nbuffer_store_dword v2, v3, {sr(R_WS,4)}, {sr(sT)} offen sc1\ns_mov_b64 exec, -1')
    stamp(a,8)
    sMT=sWSTEP; sK2=sKVO
    a(f's_and_b32 {sr(sMT)}, {sr(sU)}, 1\ns_lshr_b32 {sr(sK2)}, {sr(sU)}, 1')
    FA=0
    E0=32; E1=36; BA=40; BB=48; XR=52
    LD=112
    srd(a,R_B,P_B2,1024)
    a(f's_lshl_b32 {sr(sT)}, {sr(sK2)}, 20\ns_lshl_b32 {sr(sT2)}, {sr(sJ)}, 7\ns_add_u32 {sr(sT)}, {sr(sT)}, {sr(sT2)}')
    a(f'v_lshrrev_b32 v68, 5, {vr(vL)}\nv_lshlrev_b32 v69, 20, v68\nv_lshl_add_u32 v69, {vr(vL)}, 1, v69')
    a(f'buffer_load_ushort {vr(BA)}, v69, {sr(R_B,4)}, {sr(sT)} offen\nbuffer_load_ushort {vr(BA+4)}, v69, {sr(R_B,4)}, {sr(sT)} offen offset:64')
    a(f'v_and_b32 v70, 31, {vr(vL)}\nv_lshlrev_b32 v71, 10, v70\nv_lshl_add_u32 v71, v68, 3, v71')
    a(f's_lshl_b32 {sr(sT)}, {sr(sRB)}, 16\ns_lshl_b32 {sr(sT3)}, {sr(sMT)}, 15\ns_add_u32 {sr(sT)}, {sr(sT)}, {sr(sT3)}\ns_add_u32 {sr(sT)}, {sr(sT)}, {sr(sT2)}')
    a(f's_mov_b32 {sr(sC0)}, {sr(sT)}\ns_xor_b32 {sr(sT3)}, {sr(sK2)}, 1\ns_lshl_b32 {sr(sT3)}, {sr(sT3)}, 22\ns_add_u32 {sr(sT)}, {sr(sT)}, {sr(sT3)}')
    for t in range(2):
        for hf in range(2):
            for q in range(2): a(f'buffer_load_dwordx2 {vr(XR+8*t+4*hf+2*q,2)}, v71, {sr(R_X,4)}, {sr(sT)} offen offset:{t*64+hf*32+q*16}')
    for r in (BA+1,BA+2,BA+3,BA+5,BA+6,BA+7,BB+1,BB+2,BB+3): a(f'v_mov_b32 {vr(r)}, 0')
    a(f'v_mov_b32 {vr(BB)}, 0x3f80')
    a(f'v_bfe_u32 v72, {vr(vL)}, 2, 1\nv_cmp_eq_u32 vcc, v72, v68\nv_and_b32 v73, 1, {vr(vL)}\nv_lshlrev_b32 v73, 4, v73\nv_mov_b32 v74, 0x3f80\nv_lshlrev_b32 v74, v73, v74\nv_cndmask_b32 v74, 0, v74, vcc')
    a(f'v_bfe_u32 v72, {vr(vL)}, 1, 1\nv_bfe_u32 v73, {vr(vL)}, 3, 2\nv_lshl_add_u32 v72, v73, 1, v72')
    for r in range(8):
        a(f'v_cmp_eq_u32 vcc, {r}, v72\ns_nop 1\nv_cndmask_b32 {vr(E0+r)}, 0, v74, vcc')
    a(f'v_lshlrev_b32 v72, 7, {vr(vL)}\ns_lshl_b32 {sr(sT)}, {sr(sRB)}, 10\ns_lshr_b32 {sr(sT2)}, {sr(sJ)}, 1\ns_lshl_b32 {sr(sT2)}, {sr(sT2)}, 2\ns_add_u32 {sr(sT)}, {sr(sT)}, {sr(sT2)}\ns_add_u32 {sr(sT)}, {sr(sT)}, {WS_F2}')
    poll(a,73,72,R_WS,sr(sT),8,sleep=4)
    stamp(a,9)
    a(f's_lshl_b32 {sr(sT)}, {sr(sRB)}, 3\ns_add_u32 {sr(sT)}, {sr(sT)}, {sr(sJ)}\ns_lshl_b32 {sr(sT)}, {sr(sT)}, 1\ns_add_u32 {sr(sT)}, {sr(sT)}, {sr(sK2)}\ns_lshl_b32 {sr(sT)}, {sr(sT)}, 15\ns_lshl_b32 {sr(sT2)}, {sr(sMT)}, 11\ns_add_u32 {sr(sT)}, {sr(sT)}, {sr(sT2)}\ns_add_u32 {sr(sT)}, {sr(sT)}, {WS_P}')
    for s in range(4):
        for t in range(2):
            a(f's_add_u32 {sr(sT2)}, {sr(sT)}, {s*8192+t*4096}')
            for hf in range(2): a(f'buffer_load_dwordx4 {vr(LD+16*s+8*t+4*hf,4)}, {vr(vLA)}, {sr(R_WS,4)}, {sr(sT2)} offen offset:{hf*1024} sc1')
    for t in range(2): a(MF(FA+16*t,BA+4*t,BB,'0'))
    for hf in range(2):
        for t in range(2): a(MF(FA+16*t,E0+4*hf,XR+8*t+4*hf))
    for s in range(4):
        a(f's_waitcnt vmcnt({12-4*s})')
        for hf in range(2):
            for t in range(2): a(MF(FA+16*t,E0+4*hf,LD+16*s+8*t+4*hf))
    a(f's_lshl_b32 {sr(sT)}, {sr(sK2)}, 15\nv_add_u32 {vr(vA0)}, {sr(sT)}, v200\nv_xor_b32 {vr(vA1)}, 64, {vr(vA0)}')
    stamp(a,10)
    a('s_barrier\ns_barrier')
    a(f'v_lshrrev_b32 v72, 2, {vr(vL)}\nv_and_b32 v73, 3, {vr(vL)}\nv_lshlrev_b32 v73, 2, v73\nv_lshl_add_u32 v72, v72, 7, v73')
    a(f's_lshl_b32 {sr(sT)}, {sr(sRB)}, 1\ns_add_u32 {sr(sT)}, {sr(sT)}, {sr(sK2)}\ns_lshl_b32 {sr(sT)}, {sr(sT)}, 9\ns_add_u32 {sr(sT)}, {sr(sT)}, {WS_F3}')
    WF=96
    def rw(i):
        f=WF+8*(i%2); o=i*2048
        return [f'ds_read_b64_tr_b16 {vr(f,2)}, {vr(vA0)} offset:{o}',f'ds_read_b64_tr_b16 {vr(f+2,2)}, {vr(vA0)} offset:{o+1024}',
                f'ds_read_b64_tr_b16 {vr(f+4,2)}, {vr(vA1)} offset:{o}',f'ds_read_b64_tr_b16 {vr(f+6,2)}, {vr(vA1)} offset:{o+1024}']
    for x in rw(0): a(x)
    poll(a,80,72,R_WS,sr(sT),16)
    stamp(a,11)
    a(f's_lshl_b32 {sr(sT)}, {sr(sRB)}, 1\ns_add_u32 {sr(sT)}, {sr(sT)}, {sr(sK2)}\ns_lshl_b32 {sr(sT)}, {sr(sT)}, 15\ns_lshl_b32 {sr(sT2)}, {sr(sMT)}, 10\ns_add_u32 {sr(sT)}, {sr(sT)}, {sr(sT2)}\ns_add_u32 {sr(sT)}, {sr(sT)}, {WS_O}')
    for i in range(16):
        a(f'buffer_load_dwordx4 {vr(LD+4*i,4)}, {vr(vLA)}, {sr(R_WS,4)}, {sr(sT)} offen offset:{(i%2)*2048} sc1')
        if i%2: a(f's_add_u32 {sr(sT)}, {sr(sT)}, 4096')
    for i in range(16):
        f=WF+8*(i%2)
        if i<15:
            for x in rw(i+1): a(x)
        a(f's_waitcnt vmcnt({15-i}) lgkmcnt({4 if i<15 else 0})')
        a(MF(FA,f,LD+4*i)); a(MF(FA+16,f+4,LD+4*i))
    XB=slot(0)
    a(f's_lshl_b32 {sr(sT)}, {sr(sU)}, 12\ns_add_u32 {sr(sT)}, {sr(sT)}, {XB+6*2304*4}\nv_add_u32 v72, {sr(sT)}, {vr(vLA)}')
    a(f's_xor_b32 {sr(sT)}, {sr(sU)}, 2\ns_lshl_b32 {sr(sT)}, {sr(sT)}, 12\ns_add_u32 {sr(sT)}, {sr(sT)}, {XB+6*2304*4}\nv_add_u32 v73, {sr(sT)}, {vr(vLA)}')
    l1=L('k1'); l2=L('kd')
    a(f's_cmp_eq_u32 {sr(sK2)}, 0\ns_cbranch_scc0 {l1}')
    a.nop(6)
    for i in range(4): a(f'ds_write_b128 v72, {vr(FA+16+4*i,4)} offset:{1024*i}')
    a(f's_branch {l2}\n{l1}:')
    a.nop(6)
    for i in range(4): a(f'ds_write_b128 v72, {vr(FA+4*i,4)} offset:{1024*i}')
    for i in range(8): a(f'v_mov_b64 {vr(FA+2*i,2)}, {vr(FA+16+2*i,2)}')
    a(f'{l2}:')
    srd(a,R_T0,P_OUT,2048*1024)
    a(f'v_lshlrev_b32 v71, 10, v70\nv_lshl_add_u32 v71, v68, 4, v71\ns_lshl_b32 {sr(sT)}, {sr(sK2)}, 6\ns_add_u32 {sr(sT)}, {sr(sT)}, {sr(sC0)}')
    a('s_waitcnt lgkmcnt(0)\ns_barrier')
    for i in range(4): a(f'ds_read_b128 {vr(32+4*i,4)}, v73 offset:{1024*i}')
    for i in range(4):
        a(f's_waitcnt lgkmcnt({3-i})')
        a(f'v_pk_add_f32 {vr(FA+4*i,2)}, {vr(FA+4*i,2)}, {vr(32+4*i,2)}\nv_pk_add_f32 {vr(FA+4*i+2,2)}, {vr(FA+4*i+2,2)}, {vr(32+4*i+2,2)}')
    pack(a,48,FA,16)
    a.nop(2)
    a('v_permlane32_swap_b32 v48, v50\nv_permlane32_swap_b32 v49, v51\nv_permlane32_swap_b32 v52, v54\nv_permlane32_swap_b32 v53, v55')
    a(f'buffer_store_dwordx4 v[48:51], v71, {sr(R_T0,4)}, {sr(sT)} offen\nbuffer_store_dwordx4 v[52:55], v71, {sr(R_T0,4)}, {sr(sT)} offen offset:32')
    stamp(a,12)
    dump_stamps(a)

HEAD=open('cdna_kernels/'+NAME+'.s.ref').read().split('; Override launch')[0]
def full():
    lab[0]=0
    a=build()
    w=check(a.lines)
    for x in w: print('HAZARD',x,file=sys.stderr)
    t=HEAD+f'; @launch grid=(256,1,1) block=(512,1,1) lds={LDS_TOTAL}\n'
    t+=f'.amdgcn_target "amdgcn-amd-amdhsa--gfx950"\n.text\n.globl {NAME}_kernel\n.p2align 8\n.type {NAME}_kernel,@function\n{NAME}_kernel:\n'
    t+=a.text()+' s_endpgm\n'
    t+=f'''.section .rodata,"a"
.p2align 6
.amdhsa_kernel {NAME}_kernel
  .amdhsa_next_free_vgpr 256
  .amdhsa_next_free_sgpr 102
  .amdhsa_accum_offset 256
  .amdhsa_group_segment_fixed_size 0
  .amdhsa_kernarg_size 104
  .amdhsa_user_sgpr_count 2
  .amdhsa_user_sgpr_kernarg_segment_ptr 1
  .amdhsa_system_sgpr_workgroup_id_x 1
.end_amdhsa_kernel
'''
    return t
if __name__=='__main__':
    out=sys.argv[1]
    for kv in sys.argv[2:]:
        k,v=kv.split('='); setattr(cfg,k,eval(v))
    open(out,'w').write(full())
```

```python
import re
class Asm:
    def __init__(self):
        self.lines=[]
    def __call__(self, s=''):
        for l in s.split('\n'):
            l=l.rstrip()
            if l.strip()=='' : continue
            self.lines.append(l if (l.strip().endswith(':') or l.strip().startswith('.') or l.strip().startswith(';')) else ' '+l.strip())
    def nop(self,n):
        while n>0:
            k=min(n,16); self(f's_nop {k-1}'); n-=k
    def text(self): return '\n'.join(self.lines)+'\n'

def vr(a,n=1): return f'v{a}' if n==1 else f'v[{a}:{a+n-1}]'
def sr(a,n=1): return f's{a}' if n==1 else f's[{a}:{a+n-1}]'

_reg=re.compile(r'\b([vsa])(?:(\d+)|\[(\d+):(\d+)\])')
def regs(tok):
    out=set()
    for m in _reg.finditer(tok):
        k=m.group(1)
        if m.group(2) is not None: out.add((k,int(m.group(2))))
        else: out.update((k,i) for i in range(int(m.group(3)),int(m.group(4))+1))
    if re.search(r'\bvcc\b',tok): out.add(('s','vcc'))
    if re.search(r'\bexec\b',tok): out.add(('s','exec'))
    if re.search(r'\bm0\b',tok): out.add(('s','m0'))
    return out
TRANS=('v_exp_','v_log_','v_rcp_','v_rsq_','v_sqrt_','v_sin_','v_cos_')
def parse(line):
    s=line.split(';')[0].strip()
    if not s or s.endswith(':') or s.startswith('.'): return None
    p=s.split(None,1); op=p[0]; rest=p[1] if len(p)>1 else ''
    ops=[x.strip() for x in re.split(r',(?![^\[]*\])',rest)]
    d=dict(op=op,text=s,w=set(),r=set(),kind='other',slots=1)
    if op=='s_nop': d['slots']=int(ops[0],0)+1; d['kind']='nop'; return d
    if op.startswith('v_mfma') or op.startswith('v_smfmac'):
        d['kind']='mfma'; d['w']=regs(ops[0]); d['A']=regs(ops[1]); d['B']=regs(ops[2])
        if op.startswith('v_smfmac'): d['C']=regs(ops[0]); d['B']|=regs(ops[3])
        else: d['C']=regs(ops[3])
        d['r']=d['A']|d['B']|d['C']
        d['passes']=8 if '32x32' in op else (4 if '16x16' in op else 2)
        return d
    if op.startswith('v_'):
        d['kind']='valu'
        if op.startswith('v_cmp'):
            d['w']=regs(ops[0]); d['r']=set().union(*[regs(o) for o in ops[1:]])
        elif op.startswith('v_permlane') and 'swap' in op:
            d['w']=regs(ops[0])|regs(ops[1]); d['r']=set(d['w']); d['perm']=True
        elif op.startswith('v_readfirstlane') or op.startswith('v_readlane'):
            d['w']=regs(ops[0]); d['r']=set().union(*[regs(o) for o in ops[1:]]); d['rl']=True
        elif op.startswith('v_add_co') or op.startswith('v_addc_co') or op.startswith('v_sub_co'):
            d['w']=regs(ops[0])|regs(ops[1]); d['r']=set().union(*[regs(o) for o in ops[2:]])
        else:
            d['w']=regs(ops[0]); d['r']=set().union(*[regs(o) for o in ops[1:]]) if len(ops)>1 else set()
            if op.startswith('v_fmac') or op.startswith('v_dot2c') or 'UNUSED_PRESERVE' in s: d['r']|=d['w']
            if op.startswith('v_cndmask') and len(ops)==3: d['r'].add(('s','vcc'))
        d['trans']=op.startswith(TRANS)
        d['dpp']=('_dpp' in op) or ('quad_perm' in s) or ('row_' in s)
        d['dot']=op.startswith('v_dot')
        return d
    if op.startswith('buffer_') or op.startswith('global_'):
        d['kind']='vmem'
        if 'load' in op and not re.search(r'\blds\b',s):
            d['w']=regs(ops[0]); d['r']=set().union(*[regs(o) for o in ops[1:]])
        elif 'load' in op:
            d['r']=set().union(*[regs(o) for o in ops]); d['r'].add(('s','m0')); d['dma']=True
        else:
            d['r']=set().union(*[regs(o) for o in ops]); d['data']=regs(ops[0]); d['wide']=('x3' in op or 'x4' in op)
            if 'atomic' in op and 'sc0' in s: d['w']=regs(ops[0])
        return d
    if op.startswith('ds_'):
        d['kind']='ds'
        if 'read' in op or 'rtn' in op or 'permute' in op or 'swizzle' in op:
            d['w']=regs(ops[0]); d['r']=set().union(*[regs(o) for o in ops[1:]])
        else: d['r']=set().union(*[regs(o) for o in ops])
        return d
    if op.startswith('s_'):
        d['kind']='salu'
        if op.startswith(('s_cmp','s_cbranch','s_branch','s_waitcnt','s_barrier','s_setprio','s_sleep','s_endpgm','s_setpc')):
            d['r']=set().union(*[regs(o) for o in ops]) if ops else set()
        else:
            d['w']=regs(ops[0]); d['r']=set().union(*[regs(o) for o in ops[1:]]) if len(ops)>1 else set()
            if 'saveexec' in op: d['w'].add(('s','exec'))
        return d
    return d
def check(lines, timeaware=True):
    ins=[(i,parse(l)) for i,l in enumerate(lines)]
    ins=[(i,d) for i,d in ins if d]
    warns=[]
    for n,(li,c) in enumerate(ins):
        dist=0
        for m in range(n-1,max(-1,n-40),-1):
            lp,p=ins[m]
            need=0; why=''
            V=lambda S:{x for x in S if x[0] in 'va'}
            Sg=lambda S:{x for x in S if x[0]=='s'}
            if p['kind']=='valu':
                if c['kind']=='mfma' and V(p['w'])&c['r']: need,why=2,'valu->mfma'
                if c['kind']=='valu':
                    if c.get('perm') and V(p['w'])&c['r']: need,why=2,'valu->permlane'
                    if c.get('dpp') and V(p['w'])&c['r']: need,why=max(need,2),'valu->dpp'
                    if c.get('rl') and V(p['w'])&c['r']: need,why=max(need,1),'valu->readlane'
                    if p.get('trans') and not c.get('trans') and V(p['w'])&c['r']: need,why=max(need,1),'trans->valu'
                    if Sg(p['w'])&c['r']: need,why=max(need,2),'valu sgpr->valu'
                    if p.get('dot') and (V(p['w'])&(c['r']|c['w'])) and not (c['op']==p['op'] and not (V(p['w'])&(c['r']-c['w']))): need,why=max(need,3),'dot->other'
                if c['kind']=='vmem' and Sg(p['w'])&c['r']: need,why=5,'valu sgpr->vmem'
                if p.get('trans') and c['kind'] in('vmem','ds') and V(p['w'])&c['r']: need,why=max(need,1),'trans->mem(conservative)'
                if p.get('dot') and c['kind'] in('vmem','ds','mfma') and V(p['w'])&c['r']: need,why=max(need,3),'dot->other'
            if p['kind']=='mfma':
                ps=p['passes']; big={2:5,4:8,8:12}[ps]; ov={2:4,4:6,8:10}[ps]; war={2:1,4:3,8:7}[ps]
                if c['kind']=='mfma':
                    if p['w']&(c['A']|c['B']): need,why=big,'mfma D->A/B'
                    elif p['w']&c['C']:
                        if not (p['w']==c['C'] and p['passes']==c['passes']): need,why=ov,'mfma D->C overlap'
                        elif ps==2: need,why=2,'mfma2 chain'
                    elif p['w']&c['w']: need,why=0,''
                elif c['kind'] in('valu','vmem','ds'):
                    if p['w']&(V(c['r'])|V(c['w'])): need,why=big,'mfma D->valu/mem'
                    elif c['kind']=='valu' and p['C']&V(c['w']): need,why=war,'mfma C WAR'
            if p['kind']=='salu' and ('s','m0') in p['w'] and c.get('dma'): need,why=1,'m0->dma'
            if p['kind']=='vmem' and p.get('wide') and (p['data']&V(c['w'])) : need,why=2,'store data WAR'
            if need>dist: warns.append(f'line {li+1}: need {need} have {dist} [{why}]  {p["text"]}  ->  {c["text"]}')
            s=p['slots']
            if timeaware:
                if p['kind']=='valu' and p.get('trans'): s=2
                if p['kind']=='mfma': s=3 if p['op'].startswith('v_smfmac') else 2
            dist+=s
            if dist>=20: break
            if p['op'] in('s_branch','s_endpgm','s_setpc_b64'): break
    return warns

import subprocess, tempfile, os
def _sizes(lines):
    src='.amdgcn_target "amdgcn-amd-amdhsa--gfx950"\n.text\n.p2align 8\nK:\n'+'\n'.join(l for l in lines if not l.strip().startswith('.p2align'))+'\n'
    d=tempfile.mkdtemp(); p=os.path.join(d,'a.s'); open(p,'w').write(src)
    r=subprocess.run(['clang','-x','assembler','-target','amdgcn-amd-amdhsa','-mcpu=gfx950','-c',p,'-o',p+'.o'],capture_output=True,text=True)
    assert r.returncode==0, r.stderr[:2000]
    t=subprocess.run(['llvm-objdump','-d','--mcpu=gfx950',p+'.o'],capture_output=True,text=True).stdout
    sz=[4*len(m.group(1).split()) for m in re.finditer(r'// [0-9A-F]+: ((?:[0-9A-F]{8} ?)+)',t)]
    out=[]; k=0
    for l in lines:
        if parse(l) is None: out.append(0)
        else: out.append(sz[k]); k+=1
    assert k==len(sz),(k,len(sz))
    return out
_E64OK=re.compile(r'^\s*v_(exp_f32|rcp_f32|rsq_f32|mov_b32|mov_b64|add_f32|sub_f32|mul_f32|max_f32|min_f32|add_u32|and_b32|or_b32|xor_b32|lshlrev_b32|lshrrev_b32|mul_u32_u24|min_u32|max_u32)\s')
def align(lines, minrun=3):
    sz=_sizes(lines); out=[]; off=0; align.sz={}
    idx=[i for i,l in enumerate(lines)]
    last=None
    n=len(lines)
    for i,l in enumerate(lines):
        s=l.strip()
        if s.startswith('.p2align'):
            k=1<<int(s.split()[1]); off=(off+k-1)//k*k; out.append(l); last=None; continue
        if sz[i]==0:
            out.append(l)
            continue
        if sz[i]>=8 and off%8:
            fixed=False
            run=0; k=i
            while k<n and (sz[k]>=8 or sz[k]==0):
                run+= sz[k]>=8; k+=1
            cand=[]; j=len(out)-1
            while j>=0 and len(cand)<5:
                t=out[j]
                if parse(t) is None:
                    if t.strip().startswith('.p2align'): break
                    j-=1; continue
                if align.sz.get(j,0)!=4: break
                cand.append(j); j-=1
            order=[c for b,c in enumerate(cand) if b%2==0]+([c for b,c in enumerate(cand) if b%2==1] if run>=2 else [])
            for j in order:
                t=out[j]
                if _E64OK.match(t) and 'dpp' not in t and 'sdwa' not in t and '_e64' not in t:
                    op=t.split()[0]; out[j]=t.replace(op,op+'_e64',1); align.sz[j]=8; off+=4; fixed=True; break
            if not fixed:
                if run>=minrun:
                    out.append(' s_nop 0'); align.sz[len(out)-1]=4; off+=4
        out.append(l); align.sz[len(out)-1]=sz[i]; off+=sz[i]
    return out
align.sz={}
```

```python
import sys, math, struct
from asmlib import Asm, vr, sr, check, align
NAME='parallel_sum__grouped_kv_mqa__dense_activation_gelu__prompt'
def f2u(x): return struct.unpack('<I',struct.pack('<f',x))[0]
def hx(x): return hex(f2u(x))

class Cfg:
    stamps=False
    force_slow=False
    b3pos=18
    stpace=2
    late=1
    tw=2
    lookat=16
    x=''
    pre=4
    doalign=True
    cyc=False
    codebytes=28000
    pf=True
    spin=200000
cfg=Cfg()

XS=1040; XOFF=0
SLOT0=64*XS; SLOTSZ=10240
def slot(i): return SLOT0+i*SLOTSZ
MISC=slot(8)
C_KV=MISC; C_KMAX=MISC+4; C_QMAX=MISC+8; C_H3=MISC+12; C_R3=MISC+16; C_S1=MISC+20; C_GD=MISC+24; C_S0=MISC+28; C_WO=MISC+32
H3OFF=MISC+1024
R3OFF=MISC+5120
LDS_TOTAL=163840
assert R3OFF+8192<=LDS_TOTAL
WS_KV=0
WS_F2=0x80000
WS_F1=0x90000
WS_O =0x100000
WS_P =0x400000
WS_ST=0x1800000
WS_SIZE=0x2000000
P_X,P_WQ,P_WK,P_WV,P_WO,P_BX,P_W1,P_B1=4,6,8,10,12,14,16,18
P_W2,P_B2,P_OUT,P_DBG,P_WS=20,22,24,26,28
sW=30; sRB=31; sJ=3
R_X=32; R_WA=36; R_WS=40; R_DBG=44; R_T0=48; R_T1=52; R_B=56
sU=60; sKH=61; sODD=62; sPROD=63; sSLOT=64; sWOFF=65; sWSTEP=66; sT=67
sT2=68; sT3=69; sCNT=70; sKVO=71; sC0=72; sC3=73; sONES=74; sPSLOT=75
sEX=76
sFL=79
sNON=0
sST=80
sTMP=100
O=0; Q=128; KV=160; SB=208; IDX=240; VK=241; VV=242
vL=255
vPF=254
def srd(a,dst,ptr,nbytes):
    a(f's_mov_b32 {sr(dst)}, {sr(ptr)}\ns_mov_b32 {sr(dst+1)}, {sr(ptr+1)}\ns_mov_b32 {sr(dst+2)}, {nbytes}\ns_mov_b32 {sr(dst+3)}, 0x20000')
def MF(d,A,B,C=None):
    c=vr(d,16) if C is None else C
    return f'v_mfma_f32_32x32x16_bf16 {vr(d,16)}, {vr(A,4)}, {vr(B,4)}, {c}'
def MF16(d,A,B,C=None):
    c=vr(d,4) if C is None else C
    return f'v_mfma_f32_16x16x32_bf16 {vr(d,4)}, {vr(A,4)}, {vr(B,4)}, {c}'
def SM(d,A,B,idx): return f'v_smfmac_f32_32x32x32_bf16 {vr(d,16)}, {vr(A,4)}, {vr(B,8)}, {vr(idx)}'
nstamp=[0]
def stamp(a,i):
    if cfg.stamps:
        a(f's_mem{"" if cfg.cyc else "real"}time s[{sTMP}:{sTMP+1}]\ns_waitcnt lgkmcnt(0)\ns_mov_b32 {sr(sST+i)}, {sr(sTMP)}')
def dump_stamps(a):
    if not cfg.stamps: return
    a('s_waitcnt vmcnt(0) lgkmcnt(0)')
    stamp(a,15)
    for i in range(16): a(f'v_mov_b32 {vr(i)}, {sr(sST+i)}')
    a(f's_lshl_b32 {sr(sT)}, s2, 3\ns_add_u32 {sr(sT)}, {sr(sT)}, {sr(sW)}\ns_lshl_b32 {sr(sT)}, {sr(sT)}, 6\ns_add_u32 {sr(sT)}, {sr(sT)}, {WS_ST}')
    a(f'v_mov_b32 v16, 0\nv_cmp_eq_u32 vcc, 0, {vr(vL)}\ns_and_saveexec_b64 {sr(sEX,2)}, vcc')
    for i in range(4): a(f'buffer_store_dwordx4 {vr(4*i,4)}, v16, {sr(R_WS,4)}, {sr(sT)} offen offset:{16*i}')
    a('s_waitcnt vmcnt(0)')
def gettag(a, v):
    l=L('tag'); d=L('tagd')
    a(f'v_mov_b32 {vr(v+2)}, 0\ns_mov_b32 {sr(sCNT)}, 0\n{l}:')
    a(f'buffer_load_dwordx2 {vr(v,2)}, {vr(v+2)}, {sr(R_DBG,4)}, 0 offen sc1\ns_add_u32 {sr(sCNT)}, {sr(sCNT)}, 1\ns_waitcnt vmcnt(0)')
    a(f'v_readfirstlane_b32 {sr(sNON)}, {vr(v)}\nv_readfirstlane_b32 {sr(sNON+1)}, {vr(v+1)}\ns_cmp_gt_u32 {sr(sCNT)}, {cfg.spin}\ns_cbranch_scc1 {d}')
    a(f's_cmp_lg_u32 {sr(sNON)}, 0\ns_cbranch_scc1 {d}\ns_sleep 2\ns_branch {l}\n{d}:')
lab=[0]
def L(s):
    lab[0]+=1; return f'L{s}_{lab[0]}'
def poll(a, vdst, vaddr, srdreg, soff, nlanes, sleep=1):
    l=L('poll'); d=L('pdone')
    a(f's_mov_b32 {sr(sCNT)}, 0')
    a(f's_mov_b64 exec, {hex((1<<nlanes)-1)}' if nlanes<=16 or nlanes==64 else f's_mov_b32 exec_lo, {hex((1<<nlanes)-1)}\ns_mov_b32 exec_hi, 0')
    a(f'{l}:')
    a(f'buffer_load_dword {vr(vdst)}, {vr(vaddr)}, {sr(srdreg,4)}, {soff} offen sc1')
    a(f's_add_u32 {sr(sCNT)}, {sr(sCNT)}, 1\ns_waitcnt vmcnt(0)')
    a(f'v_cmp_eq_u32 vcc, 0, {vr(vdst)}\ns_cmp_gt_u32 {sr(sCNT)}, {cfg.spin}\ns_cbranch_scc1 {d}\ns_cbranch_vccz {d}\ns_sleep {sleep}\ns_branch {l}\n{d}:')
    a('s_mov_b64 exec, -1')
def ldspoll(a, vdst, vaddr, off, val):
    l=L('lp'); d=L('lpd')
    a(f's_mov_b32 {sr(sCNT)}, 0\n{l}:\nds_read_b32 {vr(vdst)}, {vr(vaddr)} offset:{off}\ns_add_u32 {sr(sCNT)}, {sr(sCNT)}, 1\ns_waitcnt lgkmcnt(0)')
    a(f'v_cmp_gt_u32 vcc, {val}, {vr(vdst)}\ns_cmp_gt_u32 {sr(sCNT)}, {cfg.spin*8}\ns_cbranch_scc1 {d}\ns_cbranch_vccz {d}\ns_sleep 1\ns_branch {l}\n{d}:')

GC1=-2.0*math.sqrt(2/math.pi)*math.log2(math.e); GC2=GC1*0.044715
def gelu(a, src, n, tmp, cst, packed):
    for b in range(0,n,8):
        s=src+b; t=tmp
        if packed:
            for i in range(0,8,2): a(f'v_pk_mul_f32 {vr(t+i,2)}, {vr(s+i,2)}, {vr(s+i,2)}')
            for i in range(0,8,2): a(f'v_pk_fma_f32 {vr(t+i,2)}, {vr(t+i,2)}, {vr(cst+2,2)}, {vr(cst,2)}')
            for i in range(0,8,2): a(f'v_pk_mul_f32 {vr(t+i,2)}, {vr(t+i,2)}, {vr(s+i,2)}')
            for i in range(8): a(f'v_exp_f32 {vr(t+i)}, {vr(t+i)}')
            for i in range(0,8,2): a(f'v_pk_add_f32 {vr(t+i,2)}, {vr(t+i,2)}, {vr(cst+4,2)}')
            for i in range(8): a(f'v_rcp_f32 {vr(t+i)}, {vr(t+i)}')
            for i in range(0,8,2): a(f'v_pk_mul_f32 {vr(s+i,2)}, {vr(s+i,2)}, {vr(t+i,2)}')
        else:
            for i in range(8): a(f'v_mul_f32 {vr(t+i)}, {vr(s+i)}, {vr(s+i)}')
            for i in range(8): a(f'v_fma_f32 {vr(t+i)}, {vr(t+i)}, {vr(cst+2)}, {vr(cst)}')
            for i in range(8): a(f'v_mul_f32 {vr(t+i)}, {vr(t+i)}, {vr(s+i)}')
            for i in range(8): a(f'v_exp_f32 {vr(t+i)}, {vr(t+i)}')
            for i in range(8): a(f'v_add_f32 {vr(t+i)}, 1.0, {vr(t+i)}')
            for i in range(8): a(f'v_rcp_f32 {vr(t+i)}, {vr(t+i)}')
            for i in range(8): a(f'v_mul_f32 {vr(s+i)}, {vr(s+i)}, {vr(t+i)}')
def pack(a,dst,src,n):
    for i in range(n//2): a(f'v_cvt_pk_bf16_f32 {vr(dst+i)}, {vr(src+2*i)}, {vr(src+2*i+1)}')

def tr_addr(a, dst, t0, t1, rowexpr, rowbytes, swz):
    a(f'v_and_b32 {vr(t0)}, 15, {vr(vL)}\nv_lshrrev_b32 {vr(t0)}, 2, {vr(t0)}')
    a(f'v_lshrrev_b32 {vr(t1)}, 5, {vr(vL)}')
    mul={'chunk':8,'h4':4,'h8':8}[rowexpr]
    a(f'v_lshl_add_u32 {vr(dst)}, {vr(t1)}, {int(math.log2(mul))}, {vr(t0)}')
    a(f'v_lshlrev_b32 {vr(dst)}, {int(math.log2(rowbytes))}, {vr(dst)}')
    a(f'v_and_b32 {vr(t1)}, 3, {vr(vL)}\nv_lshl_add_u32 {vr(dst)}, {vr(t1)}, 3, {vr(dst)}')
    a(f'v_bfe_u32 {vr(t1)}, {vr(vL)}, 4, 1\nv_lshl_add_u32 {vr(dst)}, {vr(t1)}, 5, {vr(dst)}')
    if swz:
        a(f'v_bfe_u32 {vr(t1)}, {vr(vL)}, 3, 1\nv_lshlrev_b32 {vr(t1)}, 6, {vr(t1)}\nv_xor_b32 {vr(dst)}, {vr(dst)}, {vr(t1)}')
def line_voff(a,dst,t0,t1,stride_sgpr_or_imm):
    a(f'v_lshrrev_b32 {vr(t0)}, 3, {vr(vL)}')
    a(f'v_mul_lo_u32 {vr(dst)}, {vr(t0)}, {stride_sgpr_or_imm}')
    a(f'v_bfe_u32 {vr(t0)}, {vr(vL)}, 4, 1\nv_lshlrev_b32 {vr(t0)}, 2, {vr(t0)}')
    a(f'v_and_b32 {vr(t1)}, 7, {vr(vL)}\nv_xor_b32 {vr(t1)}, {vr(t1)}, {vr(t0)}')
    a(f'v_lshl_add_u32 {vr(dst)}, {vr(t1)}, 4, {vr(dst)}')
def dma(a, ldsexpr, vaddr, srdreg, soff):
    s,imm=ldsexpr
    if s is None: a(f's_mov_b32 m0, {imm}')
    else: a(f's_add_u32 m0, {sr(s)}, {imm}')
    return f'buffer_load_dwordx4 {vr(vaddr)}, {sr(srdreg,4)}, {soff} offen lds'

vW3D=198
vH0=228; vH1=229; vA0=230; vA1=231; vD=232; vH3=233; vXA3=234; vW3=235; vLAG=236; vTR=237; vT2=238; vTO=239
def wkvoff(i): return MISC+1024+i*1024 if i<14 else slot(7)+8192+(i-14)*1024
def w3dma(s): return [f's_mov_b32 m0, {R3OFF+(s%8)*1024}', 's_nop 0', f'buffer_load_dwordx4 {vr(vW3D)}, {sr(R_T1,4)}, {sr(sWSTEP)} offen lds', f's_add_u32 {sr(sWSTEP)}, {sr(sWSTEP)}, {16*3584}']
def build():
    a=Asm()
    a(f's_cmp_ge_u32 s2, 256\ns_cbranch_scc1 LEND')
    if cfg.stamps:
        for i in range(16): a(f's_mov_b32 {sr(sST+i)}, 0')
    stamp(a,0)
    a(f's_load_dwordx16 s[4:19], s[0:1], 0\ns_load_dwordx8 s[20:27], s[0:1], 64\ns_load_dwordx2 s[28:29], s[0:1], 96')
    a(f'v_lshrrev_b32 v1, 6, v0\nv_and_b32 {vr(vL)}, 63, v0\nv_readfirstlane_b32 {sr(sW)}, v1')
    a(f's_and_b32 {sr(sT)}, s2, 7\ns_lshr_b32 {sr(sT2)}, s2, 3')
    a(f's_and_b32 {sr(sRB)}, {sr(sT)}, 3\ns_lshl_b32 {sr(sRB)}, {sr(sRB)}, 3\ns_and_b32 {sr(sT3)}, {sr(sT2)}, 7\ns_add_u32 {sr(sRB)}, {sr(sRB)}, {sr(sT3)}')
    a(f's_lshr_b32 {sr(sJ)}, {sr(sT)}, 2\ns_lshl_b32 {sr(sJ)}, {sr(sJ)}, 2\ns_lshr_b32 {sr(sT3)}, {sr(sT2)}, 3\ns_add_u32 {sr(sJ)}, {sr(sJ)}, {sr(sT3)}')
    a(f's_and_b32 {sr(sU)}, {sr(sW)}, 3\ns_lshr_b32 {sr(sKH)}, {sr(sW)}, 2\ns_and_b32 {sr(sODD)}, {sr(sJ)}, 1')
    a(f's_cmp_eq_u32 {sr(sW)}, 7\ns_cselect_b32 {sr(sPROD)}, 1, 0')
    sRG=sKVO; sXO=sT3; sBO=sFL; sSTR=sEX
    vWD=41; vW0=42; vW1=43; vXA=44; vPA=45; vZ=47
    vBA0=50; vBA1=54; vBB=58
    a(f's_and_b32 {sr(sT)}, {sr(sRB)}, 7\nv_lshl_add_u32 {vr(vPA)}, {vr(vL)}, 3, {sr(sT)}')
    a(f's_getpc_b64 {sr(R_T1,2)}\ns_mov_b32 {sr(R_T1+2)}, {cfg.codebytes}\ns_mov_b32 {sr(R_T1+3)}, 0x20000')
    a(f's_lshl_b32 {sr(sT)}, {sr(sW)}, 6\nv_add_u32 v46, {sr(sT)}, {vr(vPA)}\nv_lshlrev_b32 v2, 7, v46')
    a(f's_mov_b64 exec, 0xff\nbuffer_load_dword {vr(vPF)}, v2, {sr(R_T1,4)}, 0 offen\ns_mov_b64 exec, -1')
    a(f's_lshl_b32 {sr(sRG)}, {sr(sJ)}, 1\ns_add_u32 {sr(sRG)}, {sr(sRG)}, {sr(sW)}\ns_and_b32 {sr(sRG)}, {sr(sRG)}, 7')
    vXO=40
    a(f'v_lshrrev_b32 v2, 3, {vr(vL)}\nv_and_b32 v3, 7, {vr(vL)}\nv_lshlrev_b32 v3, 4, v3\nv_lshl_add_u32 {vr(vXO)}, v2, 10, v3')
    a(f's_lshl_b32 {sr(sXO)}, {sr(sRB)}, 16\ns_lshl_b32 {sr(sT2)}, {sr(sRG)}, 13\ns_add_u32 {sr(sXO)}, {sr(sXO)}, {sr(sT2)}')
    a(f's_mul_i32 {sr(sSLOT)}, {sr(sW)}, {SLOTSZ}\ns_add_u32 {sr(sSLOT)}, {sr(sSLOT)}, {SLOT0}')
    a(f's_xor_b32 {sr(sT)}, {sr(sW)}, 4\ns_mul_i32 {sr(sPSLOT)}, {sr(sT)}, {SLOTSZ}\ns_add_u32 {sr(sPSLOT)}, {sr(sPSLOT)}, {SLOT0}')
    a(f's_mul_i32 {sr(sC0)}, {sr(sJ)}, 224\ns_lshl_b32 {sr(sT)}, {sr(sODD)}, 5\ns_mul_i32 {sr(sT2)}, {sr(sODD)}, 192')
    a(f's_add_u32 {sr(sC3)}, {sr(sC0)}, 192\ns_sub_u32 {sr(sC3)}, {sr(sC3)}, {sr(sT2)}\ns_add_u32 {sr(sC0)}, {sr(sC0)}, {sr(sT)}')
    a(f's_cmp_eq_u32 {sr(sU)}, 0\ns_mov_b32 {sr(sSTR)}, 3584\ns_cselect_b32 {sr(sSTR)}, 1024, {sr(sSTR)}\ns_lshl_b32 {sr(R_WA+2)}, {sr(sSTR)}, 9\ns_mov_b32 {sr(R_WA+3)}, 0x20000')
    a(f's_lshl_b32 {sr(sWSTEP)}, {sr(sSTR)}, 3')
    a(f's_lshl_b32 {sr(sT)}, {sr(sJ)}, 7')
    a(f's_lshl_b32 {sr(sBO)}, {sr(sU)}, 6\ns_add_u32 {sr(sBO)}, {sr(sBO)}, {sr(sC0)}\ns_sub_u32 {sr(sBO)}, {sr(sBO)}, 64')
    a(f's_lshl_b32 {sr(sWOFF)}, {sr(sBO)}, 1\ns_cmp_eq_u32 {sr(sU)}, 0\ns_cselect_b32 {sr(sWOFF)}, {sr(sT)}, {sr(sWOFF)}')
    a(f's_mul_i32 {sr(sT)}, {sr(sWSTEP)}, 32\ns_mul_i32 {sr(sT)}, {sr(sT)}, {sr(sKH)}\ns_add_u32 {sr(sWOFF)}, {sr(sWOFF)}, {sr(sT)}')
    a(f'v_mul_lo_u32 v3, {vr(vPA)}, {sr(sSTR)}')
    a(f's_cmp_eq_u32 {sr(sU)}, 0\ns_cselect_b32 {sr(sT)}, 1, {sr(sKH)}\ns_lshl_b32 {sr(sT)}, {sr(sT)}, 20')
    a(f's_lshl_b32 {sr(sBO)}, {sr(sBO)}, 1\ns_and_b32 {sr(sBO)}, {sr(sBO)}, 0xffff\ns_add_u32 {sr(sBO)}, {sr(sBO)}, {sr(sT)}')
    a(f'v_lshrrev_b32 v2, 5, {vr(vL)}\nv_lshlrev_b32 v2, 20, v2\nv_lshl_add_u32 v2, {vr(vL)}, 1, v2')
    a(f'v_lshlrev_b32 v39, 4, {vr(vL)}\ns_lshl_b32 {sr(sT)}, {sr(sU)}, 12\ns_add_u32 {sr(sT2)}, {sr(sT)}, {slot(4)}')
    a(f's_mov_b32 {sr(R_X+2)}, {2048*1024}\ns_mov_b32 {sr(R_X+3)}, 0x20000\ns_mov_b32 {sr(R_B+2)}, 3584\ns_mov_b32 {sr(R_B+3)}, 0x20000')
    a(f's_mov_b32 {sr(R_T0+2)}, 16384\ns_mov_b32 {sr(R_T0+3)}, 0x20000')
    a(f's_and_b32 {sr(sCNT)}, {sr(sRB)}, 7\ns_lshl_b32 {sr(sCNT)}, {sr(sCNT)}, 3\ns_add_u32 {sr(sCNT)}, {sr(sCNT)}, {sr(sW)}\ns_lshl_b32 {sr(sCNT)}, {sr(sCNT)}, 8\nv_lshlrev_b32 v38, 7, {vr(vL)}')
    a(f's_cmp_eq_u32 {sr(sU)}, 0\ns_waitcnt lgkmcnt(0)')
    a(f's_cselect_b32 {sr(R_WA)}, {sr(P_WQ)}, {sr(P_W1)}\ns_cselect_b32 {sr(R_WA+1)}, {sr(P_WQ+1)}, {sr(P_W1+1)}')
    a(f's_mov_b64 {sr(R_B,2)}, {sr(P_B1,2)}\ns_mov_b64 {sr(R_X,2)}, {sr(P_X,2)}')
    XR=64
    def xloads():
        for i in range(8): a(f'buffer_load_dwordx4 {vr(XR+4*i,4)}, {vr(vXO)}, {sr(R_X,4)}, {sr(sXO)} offen offset:{128*i}')
    a(f's_mov_b64 exec, 0x3ff\nbuffer_load_dword {vr(vPF)}, v3, {sr(R_WA,4)}, {sr(sWOFF)} offen')
    a(f's_cmp_eq_u32 {sr(sODD)}, 0\ns_cselect_b32 {sr(R_T0)}, {sr(P_WK)}, {sr(P_WV)}\ns_cselect_b32 {sr(R_T0+1)}, {sr(P_WK+1)}, {sr(P_WV+1)}')
    a(f's_mov_b64 exec, 3\nbuffer_load_dword {vr(vPF)}, v38, {sr(R_T0,4)}, {sr(sCNT)} offen\ns_mov_b64 exec, -1')
    a(f'buffer_load_ushort {vr(vBA0)}, v2, {sr(R_B,4)}, {sr(sBO)} offen\nbuffer_load_ushort {vr(vBA1)}, v2, {sr(R_B,4)}, {sr(sBO)} offen offset:64')
    a(f's_lshl_b32 {sr(sT)}, {sr(sC3)}, 1\nbuffer_load_ushort v192, v2, {sr(R_B,4)}, {sr(sT)} offen')
    xloads()
    srd(a,R_DBG,P_DBG,256); srd(a,R_T1,P_W1,512*3584)
    lA=L('nottag')
    a(f's_lshl_b32 {sr(sT)}, s2, 3\ns_add_u32 {sr(sT)}, {sr(sT)}, {sr(sW)}\ns_cmp_eq_u32 {sr(sT)}, 7\ns_cbranch_scc0 {lA}')
    a(f's_memrealtime s[0:1]\nv_mov_b32 v38, 0\ns_waitcnt lgkmcnt(0)\ns_or_b32 s0, s0, 1\nv_mov_b32 v36, s0\nv_mov_b32 v37, s1')
    a(f's_mov_b64 exec, 1\nbuffer_store_dwordx2 v[36:37], v38, {sr(R_DBG,4)}, 0 offen sc1\ns_mov_b64 exec, -1\ns_waitcnt vmcnt(1)')
    a(f'{lA}:')
    line_voff(a,vWD,2,38,sr(sSTR))
    srd(a,R_WS,P_WS,WS_SIZE)
    a(f'v_mov_b32 {vr(vZ)}, 0\nv_lshlrev_b32 v2, 2, {vr(vL)}\nv_add_u32 v2, {MISC}, v2\nds_write_b32 v2, {vr(vZ)}')
    tr_addr(a,vW0,2,38,'chunk',128,True)
    a(f'v_add_u32 {vr(vW0)}, {sr(sSLOT)}, {vr(vW0)}\nv_xor_b32 {vr(vW1)}, 64, {vr(vW0)}')
    a(f'v_and_b32 v2, 31, {vr(vL)}\nv_mul_u32_u24 {vr(vXA)}, {XS}, v2\nv_lshrrev_b32 v2, 5, {vr(vL)}\nv_lshl_add_u32 {vr(vXA)}, v2, 4, {vr(vXA)}')
    a(f'v_mov_b32 {vr(vXA3)}, {vr(vXA)}\ns_lshl_b32 {sr(sT)}, {sr(sKH)}, 9\nv_add_u32 {vr(vXA)}, {sr(sT)}, {vr(vXA)}')
    a(f'v_lshlrev_b32 {vr(vLAG)}, 4, {vr(vL)}')
    a(f'v_add_u32 {vr(vH0)}, {slot(4)}, {vr(vLAG)}\nv_add_u32 {vr(vH1)}, {slot(0)}, {vr(vLAG)}\nv_add_u32 {vr(vH3)}, {H3OFF}, {vr(vLAG)}')
    tr_addr(a,vTR,2,38,'h4',128,True)
    a(f'v_add_u32 {vr(vA0)}, {sr(sPSLOT)}, {vr(vTR)}\nv_xor_b32 {vr(vA1)}, 64, {vr(vA0)}')
    a(f's_mov_b32 {sr(sT2)}, 1024'); line_voff(a,vD,2,38,sr(sT2))
    tr_addr(a,vW3,2,38,'h8',64,False)
    a(f'v_add_u32 {vr(vW3)}, {R3OFF}, {vr(vW3)}')
    a(f'v_lshrrev_b32 {vr(vT2)}, 1, {vr(vL)}\nv_lshlrev_b32 {vr(vT2)}, 13, {vr(vT2)}\nv_and_b32 v2, 1, {vr(vL)}\nv_lshl_add_u32 {vr(vT2)}, v2, 7, {vr(vT2)}\nv_lshlrev_b32 {vr(vTO)}, 13, {vr(vL)}')
    a(f'v_lshrrev_b32 v2, 2, {vr(vL)}\nv_mul_u32_u24 {vr(vW3D)}, 3584, v2\nv_and_b32 v2, 3, {vr(vL)}\nv_lshl_add_u32 {vr(vW3D)}, v2, 4, {vr(vW3D)}')
    a(f's_mov_b32 {sr(sONES)}, 0x3f803f80')
    for r in (vBA0+1,vBA0+2,vBA0+3,vBA1+1,vBA1+2,vBA1+3,vBB+1,vBB+2,vBB+3): a(f'v_mov_b32 {vr(r)}, 0')
    a(f'v_mov_b32 {vr(vBB)}, 0x3f80')
    vXW=48
    a(f'v_lshrrev_b32 v2, 3, {vr(vL)}\ns_lshl_b32 {sr(sT)}, {sr(sRG)}, 3\nv_add_u32 v2, {sr(sT)}, v2\nv_mul_u32_u24 v2, {XS}, v2\nv_and_b32 v38, 7, {vr(vL)}\nv_lshl_add_u32 {vr(vXW)}, v38, 4, v2')
    for i in range(4): a(f'v_mov_b32 {vr(4+i)}, 0')
    def ringfill(c0,c1):
        for c in range(c0,c1):
            x=dma(a,(sSLOT,c*1024),vWD,R_WA,sr(sWOFF)); a('s_nop 0'); a(x); a(f's_add_u32 {sr(sWOFF)}, {sr(sWOFF)}, {sr(sWSTEP)}')
    def latetouch(done):
        a(f's_mul_i32 {sr(sT)}, {sr(sWSTEP)}, {10-done}\ns_add_u32 {sr(sT)}, {sr(sT)}, {sr(sWOFF)}')
        a(f's_mov_b64 exec, 0x3fffff\nbuffer_load_dword {vr(vPF)}, v3, {sr(R_WA,4)}, {sr(sT)} offen')
        a(f'v_mul_u32_u24 v46, 3584, v46\ns_lshl_b32 {sr(sT2)}, {sr(sC3)}, 1\ns_mov_b64 exec, 0xff')
        a(f'buffer_load_dword {vr(vPF)}, v46, {sr(R_T1,4)}, {sr(sT2)} offen\ns_mov_b64 exec, -1')
    def stats(waits):
        for i in range(32):
            if i%4==0 and waits: a(f's_waitcnt vmcnt({7-i//4})')
            if i==28: stamp(a,1)
            a(f'v_dot2_f32_bf16 {vr(4+i%2)}, {vr(XR+i)}, {sr(sONES)}, {vr(4+i%2)}')
            a(f'v_dot2_f32_bf16 {vr(6+i%2)}, {vr(XR+i)}, {vr(XR+i)}, {vr(6+i%2)}')
    stats(True)
    a.nop(2)
    a.nop(1)
    a('v_add_f32 v4, v4, v5\nv_add_f32 v6, v6, v7')
    for dpp in ('quad_perm:[1,0,3,2]','quad_perm:[2,3,0,1]','row_half_mirror'):
        a.nop(1)
        a(f'v_add_f32_dpp v4, v4, v4 {dpp} row_mask:0xf bank_mask:0xf\nv_add_f32_dpp v6, v6, v6 {dpp} row_mask:0xf bank_mask:0xf')
    a(f'v_mul_f32 v4, {hx(1/512)}, v4\nv_mul_f32 v6, {hx(1/512)}, v6')
    a(f'v_fma_f32 v6, -v4, v4, v6\nv_max_f32 v6, 0, v6\nv_add_f32 v6, {hx(1e-5)}, v6\nv_rsq_f32 v8, v6')
    l=L('nlt')
    a(f's_cmp_eq_u32 {sr(sKH)}, 0\ns_cbranch_scc1 {l}')
    latetouch(0)
    a(f'{l}:')
    a('v_mul_f32 v10, v4, v8\nv_mov_b32 v9, v8\nv_sub_f32 v10, 0, v10\nv_mov_b32 v11, v10')
    for i in range(8):
        t=12+8*(i%2)
        for k in range(4):
            a(f'v_lshlrev_b32 {vr(t+2*k)}, 16, {vr(XR+4*i+k)}\nv_and_b32 {vr(t+2*k+1)}, 0xffff0000, {vr(XR+4*i+k)}')
        for k in range(4): a(f'v_pk_fma_f32 {vr(t+2*k,2)}, {vr(t+2*k,2)}, v[8:9], v[10:11]')
        for k in range(4): a(f'v_cvt_pk_bf16_f32 {vr(XR+4*i+k)}, {vr(t+2*k)}, {vr(t+2*k+1)}')
        a(f'ds_write_b128 {vr(vXW)}, {vr(XR+4*i,4)} offset:{128*i}')
    l=L('nfill')
    a(f's_cmp_eq_u32 {sr(sKH)}, 0\ns_cbranch_scc0 {l}')
    a(f'v_bfe_u32 v12, {vr(vL)}, 3, 1\nv_bfe_u32 v13, {vr(vL)}, 4, 1\nv_xor_b32 v12, v12, v13\nv_mul_u32_u24 v12, 24, v12\nv_xor_b32 v12, v12, {vr(vL)}\nv_lshlrev_b32 v12, 4, v12')
    a(f's_lshl_b32 {sr(sT)}, {sr(sWSTEP)}, 5\ns_add_u32 {sr(sFL)}, {sr(sWOFF)}, {sr(sT)}')
    for p in range(cfg.pre):
        ringfill(2*p,2*p+2)
        for c in (2*p,2*p+1):
            a(f's_add_u32 m0, {sr(sPSLOT)}, {c*1024}\ns_nop 0\nbuffer_load_dwordx4 {vr(vWD)}, {sr(R_WA,4)}, {sr(sFL)} offen lds\ns_add_u32 {sr(sFL)}, {sr(sFL)}, {sr(sWSTEP)}')
        if p==0:
            a(f's_lshl_b32 {sr(sT)}, {sr(sU)}, 12\ns_add_u32 {sr(sT2)}, {sr(sT)}, {wkvoff(0)}\ns_add_u32 {sr(sT3)}, {sr(sT2)}, 2048\ns_cmp_eq_u32 {sr(sU)}, 3\ns_cselect_b32 {sr(sT3)}, {wkvoff(14)}, {sr(sT3)}')
            for i in range(4):
                a(f's_add_u32 m0, {sr(sT2 if i<2 else sT3)}, {(i%2)*1024}\ns_add_u32 {sr(sCNT)}, {sr(sT)}, {i*1024}\nbuffer_load_dwordx4 v12, {sr(R_T0,4)}, {sr(sCNT)} offen lds')
    latetouch(2*cfg.pre)
    l2=L('filld')
    a(f's_branch {l2}\n{l}:\ns_mul_i32 {sr(sT)}, {sr(sWSTEP)}, {2*cfg.pre}\ns_add_u32 {sr(sWOFF)}, {sr(sWOFF)}, {sr(sT)}\n{l2}:')
    a('s_waitcnt vmcnt(2) lgkmcnt(0)')
    stamp(a,2)
    a('s_barrier')
    lP=L('p1'); lP2=L('p1b')
    ringfill(2*cfg.pre,8)
    a(f's_cmp_lg_u32 {sr(sPROD)}, 0\ns_cbranch_scc0 {lP2}')
    a('s_setprio 2')
    vx=2; vw=30; vw2=31; FX=64; DK=224; NS=6
    a(f'v_and_b32 v28, 15, {vr(vL)}\nv_lshrrev_b32 v29, 4, {vr(vL)}\ns_lshr_b32 {sr(sT3)}, {sr(sJ)}, 1')
    a(f's_lshl_b32 {sr(sT)}, {sr(sT3)}, 4\nv_add_u32 v5, {sr(sT)}, v28\nv_mul_u32_u24 {vr(vx)}, {XS}, v5\nv_lshl_add_u32 {vr(vx)}, v29, 4, {vr(vx)}')
    a(f'v_and_b32 v21, 1, v29\nv_lshrrev_b32 v22, 1, v29\nv_lshlrev_b32 v30, 3, v28\nv_lshl_add_u32 v30, v21, 7, v30\nv_lshl_add_u32 v30, v22, 9, v30')
    a(f'v_add_u32 {vr(vw2)}, {wkvoff(14)}, v30\nv_add_u32 {vr(vw)}, {wkvoff(0)}, v30')
    a(f'v_mov_b32 v38, 0\nbuffer_load_dwordx2 v[36:37], v38, {sr(R_DBG,4)}, 0 offen sc1')
    def kvread(s_):
        f=FX+8*(s_%NS)
        a(f'ds_read_b128 {vr(f,4)}, {vr(vx)} offset:{s_*64}')
        for q in range(2): a(f'ds_read_b64_tr_b16 {vr(f+4+2*q,2)}, {vr(vw if s_<14 else vw2)} offset:{(s_ if s_<14 else s_-14)*1024+q*256}')
    for s_ in range(5): kvread(s_)
    lv=L('vt'); ld=L('kvd')
    a(f's_cmp_eq_u32 {sr(sODD)}, 0\ns_cbranch_scc0 {lv}')
    for isv in range(2):
        for s_ in range(16):
            f=FX+8*(s_%NS)
            a(f's_waitcnt lgkmcnt({3*min(4,15-s_)})')
            if s_+5<16: kvread(s_+5)
            a(MF16(DK,f,f+4,'0' if s_==0 else None) if isv else MF16(DK,f+4,f,'0' if s_==0 else None))
        ringfill(8,10)
        a(f's_lshl_b32 {sr(sT)}, {sr(sRB)}, 12\ns_lshr_b32 {sr(sT2)}, {sr(sT3)}, 1\ns_lshl_b32 {sr(sT2)}, {sr(sT2)}, 11\ns_add_u32 {sr(sT)}, {sr(sT)}, {sr(sT2)}')
        a(f's_and_b32 {sr(sT2)}, {sr(sT3)}, 1\ns_lshl_b32 {sr(sT2)}, {sr(sT2)}, {9 if isv else 8}\ns_add_u32 {sr(sT)}, {sr(sT)}, {sr(sT2)}\nv_lshlrev_b32 v20, 4, v28')
        a(f'v_cvt_pk_bf16_f32 v16, {vr(DK)}, {vr(DK+1)}\nv_cvt_pk_bf16_f32 v17, {vr(DK+2)}, {vr(DK+3)}')
        if not isv:
            a(f'v_lshl_add_u32 v23, v21, 9, v20\nv_lshl_add_u32 v23, v22, 3, v23')
            a(f'buffer_store_dwordx2 v[16:17], v23, {sr(R_WS,4)}, {sr(sT)} offen sc1')
            a(f'v_mul_f32 v26, {vr(DK)}, {vr(DK)}\nv_fma_f32 v26, {vr(DK+1)}, {vr(DK+1)}, v26\nv_fma_f32 v26, {vr(DK+2)}, {vr(DK+2)}, v26\nv_fma_f32 v26, {vr(DK+3)}, {vr(DK+3)}, v26')
            a('v_mov_b32 v25, v26\ns_nop 1\nv_permlane32_swap_b32 v25, v26\ns_nop 1\nv_add_f32 v26, v25, v26')
            a(f's_branch {ld}\n{lv}:')
        else:
            a(f'v_lshl_add_u32 v23, v22, 8, v20\nv_lshl_add_u32 v23, v21, 3, v23')
            a(f'buffer_store_dwordx2 v[16:17], v23, {sr(R_WS,4)}, {sr(sT)} offen offset:1024 sc1')
            a(f'v_max3_f32 v27, abs({vr(DK)}), abs({vr(DK+1)}), abs({vr(DK+2)})\nv_max_f32 v27, abs({vr(DK+3)}), v27')
            a(f'v_mov_b32 v25, 0x7e000000\nv_cmp_lt_f32 vcc, {hx(2.0**20)}, v27\ns_nop 1\nv_cndmask_b32 v26, 0, v25, vcc')
            a('v_mov_b32 v25, v26\ns_nop 1\nv_permlane32_swap_b32 v25, v26\ns_nop 1\nv_max_u32 v26, v25, v26')
    a(f'{ld}:')
    a('v_mov_b32 v25, v26\ns_nop 1\nv_permlane16_swap_b32 v25, v26\ns_nop 1\nv_add_f32 v26, v25, v26')
    for dpp in ('row_shr:1','row_shr:2','row_shr:4','row_shr:8'):
        a(f's_nop 1\nv_max_u32_dpp v26, v26, v26 {dpp} row_mask:0xf bank_mask:0xf')
    stamp(a,13)
    a(f's_lshl_b32 {sr(sT)}, {sr(sRB)}, 3\ns_add_u32 {sr(sT)}, {sr(sT)}, {sr(sJ)}\ns_lshl_b32 {sr(sT)}, {sr(sT)}, 4\ns_add_u32 {sr(sT)}, {sr(sT)}, {WS_F1}\nv_mov_b32 v27, 0')
    a(f's_mov_b32 {sr(sKVO)}, {sr(sT)}\ns_setprio 0\ns_branch {lP}\n{lP2}:')
    ringfill(8,10)
    a(f'{lP}:')
    ACC=128
    FR=64
    def p1read(s):
        f=FR+16*(s%3); o=(s%5)*2048
        return [f'ds_read_b128 {vr(f,4)}, {vr(vXA)} offset:{s*32}',
                f'ds_read_b64_tr_b16 {vr(f+8,2)}, {vr(vW0)} offset:{o}',f'ds_read_b64_tr_b16 {vr(f+10,2)}, {vr(vW0)} offset:{o+512}',
                f'ds_read_b128 {vr(f+4,4)}, {vr(vXA)} offset:{s*32+32*XS}',
                f'ds_read_b64_tr_b16 {vr(f+12,2)}, {vr(vW1)} offset:{o}',f'ds_read_b64_tr_b16 {vr(f+14,2)}, {vr(vW1)} offset:{o+512}']
    for x in p1read(0)+p1read(1): a(x)
    for mt in range(2):
        for t in range(2): a(MF(ACC+16*(2*mt+t),(vBA0,vBA1)[t],vBB,'0'))
    a('s_waitcnt lgkmcnt(6)')
    for s in range(16):
        f=FR+16*(s%3)
        mf=[MF(ACC+16*(2*mt+t),f+8+4*t,f+4*mt) for mt in range(2) for t in range(2)]
        rd=p1read(s+2) if s<14 else []
        if 'nox' in cfg.x: rd=[r if 'b128' not in r else 's_nop 0' for r in rd]
        if 'notr' in cfg.x: rd=[r if 'b128' in r else 's_nop 0' for r in rd]
        if 'nomf' in cfg.x: mf=['s_nop 0']*4
        if s<3 and s+2>=cfg.pre: a('s_waitcnt vmcnt(4)')
        if 3<=s<14: a(f's_waitcnt vmcnt({4 if s<12 else 2*(13-s)})')
        if s==3: a(f's_cmp_lg_u32 {sr(sPROD)}, 0\ns_cbranch_scc1 LPUB\nLPUBD:')
        a(mf[0])
        for x in rd[:3]: a(x)
        a(mf[1])
        for x in rd[3:]: a(x)
        a(mf[2])
        if s+5<16 and 'nodma' not in cfg.x:
            for c in range(2):
                x=dma(a,(sSLOT,(s%5)*2048+c*1024),vWD,R_WA,sr(sWOFF)); a('s_nop 0' if c==0 else mf[3]); a(x); a(f's_add_u32 {sr(sWOFF)}, {sr(sWOFF)}, {sr(sWSTEP)}')
        else: a(mf[3])
        if s==11:
            srd(a,R_T0,P_W2,1792*1024); srd(a,R_WA,P_WO,512*1024)
        if s==13:
            l=L('nw7')
            a(f's_cmp_lg_u32 {sr(sPROD)}, 0\ns_cbranch_scc0 {l}')
            a(f's_lshl_b32 {sr(sWSTEP)}, {sr(sC3)}, 1')
            for s_ in range(8):
                for y in w3dma(s_): a(y)
            a(f's_and_b32 {sr(sT)}, {sr(sRB)}, 7\ns_mul_i32 {sr(sT2)}, {sr(sJ)}, 224\ns_add_u32 {sr(sT2)}, {sr(sT2)}, {sr(sT)}\ns_lshl_b32 {sr(sT2)}, {sr(sT2)}, 10\ns_mov_b32 exec_hi, 0xffffff')
            for g in range(4): a(f'buffer_load_dword {vr(vPF)}, {vr(vT2)}, {sr(R_T0,4)}, {sr(sT2)} offen offset:{256*g}')
            a(f's_lshl_b32 {sr(sT)}, {sr(sT)}, 10\ns_lshl_b32 {sr(sT2)}, {sr(sJ)}, 7\ns_add_u32 {sr(sT)}, {sr(sT)}, {sr(sT2)}\ns_mov_b64 exec, -1')
            a(f'buffer_load_dword {vr(vPF)}, {vr(vTO)}, {sr(R_WA,4)}, {sr(sT)} offen\n{l}:')
        if s<15: a(f's_waitcnt lgkmcnt({6 if s<14 else 0})')
    stamp(a,4)
    vLA=40
    a(f'v_lshlrev_b32 {vr(vLA)}, 4, {vr(vL)}\nv_add_u32 v41, {sr(sSLOT)}, {vr(vLA)}\nv_add_u32 v42, {sr(sPSLOT)}, {vr(vLA)}')
    a.nop(4)
    a.nop(2)
    a(f's_mov_b32 {sr(sFL)}, {WS_F1}\nv_mov_b32 v249, 0\nv_mov_b32 {vr(VK)}, {vr(vLA)}')
    lg=L('gx'); lx=L('xdone')
    a(f's_cmp_eq_u32 {sr(sKH)}, 0\ns_cbranch_scc0 {lg}')
    for i in range(8): a(f'ds_write_b128 v41, {vr(ACC+32+4*i,4)} offset:{1024*i}')
    a(f's_branch {lx}\n{lg}:')
    for i in range(8): a(f'ds_write_b128 v41, {vr(ACC+4*i,4)} offset:{1024*i}')
    for i in range(16): a(f'v_mov_b64 {vr(ACC+2*i,2)}, {vr(ACC+32+2*i,2)}')
    a(f'{lx}:')
    CST=44
    a(f'v_mov_b32 {vr(CST)}, {hx(GC1)}\nv_mov_b32 {vr(CST+1)}, {hx(GC1)}\nv_mov_b32 {vr(CST+2)}, {hx(GC2)}\nv_mov_b32 {vr(CST+3)}, {hx(GC2)}\nv_mov_b32 {vr(CST+4)}, 1.0\nv_mov_b32 {vr(CST+5)}, 1.0')
    a('s_waitcnt vmcnt(5) lgkmcnt(0)\ns_barrier')
    PT=64
    for i in range(8): a(f'ds_read_b128 {vr(PT+4*i,4)}, v42 offset:{1024*i}')
    def look():
        l=L('nlook')
        a(f's_cmp_eq_u32 {sr(sKH)}, 0\ns_cbranch_scc0 {l}')
        lookloads(a)
        a(f'{l}:')
    for i in range(8):
        a(f's_waitcnt lgkmcnt({7-i})')
        a(f'v_pk_add_f32 {vr(ACC+4*i,2)}, {vr(ACC+4*i,2)}, {vr(PT+4*i,2)}\nv_pk_add_f32 {vr(ACC+4*i+2,2)}, {vr(ACC+4*i+2,2)}, {vr(PT+4*i+2,2)}')
    lq=L('qepi'); le=L('epidone')
    a(f's_cmp_eq_u32 {sr(sU)}, 0\ns_cbranch_scc1 {lq}')
    gelu(a,ACC,cfg.lookat,PT,CST,True)
    look()
    gelu(a,ACC+cfg.lookat,32-cfg.lookat,PT,CST,True)
    a(f's_branch {le}\n{lq}:')
    QS=0.25*math.log2(math.e)
    a(f'v_mov_b32 v50, {hx(QS)}\nv_mov_b32 v51, {hx(QS)}')
    for i in range(16): a(f'v_pk_mul_f32 {vr(ACC+2*i,2)}, {vr(ACC+2*i,2)}, v[50:51]')
    for hq in range(4):
        a(f'v_pk_mul_f32 {vr(PT+2*hq,2)}, {vr(ACC+8*hq,2)}, {vr(ACC+8*hq,2)}')
    for i in range(1,4):
        for hq in range(4): a(f'v_pk_fma_f32 {vr(PT+2*hq,2)}, {vr(ACC+8*hq+2*i,2)}, {vr(ACC+8*hq+2*i,2)}, {vr(PT+2*hq,2)}')
    for hq in range(4): a(f'v_add_f32 {vr(PT+2*hq)}, {vr(PT+2*hq)}, {vr(PT+2*hq+1)}')
    for hq in range(4): a(f'v_mov_b32 {vr(PT+2*hq+1)}, {vr(PT+2*hq)}')
    a.nop(1)
    for hq in range(4): a(f'v_permlane32_swap_b32 {vr(PT+2*hq)}, {vr(PT+2*hq+1)}')
    a.nop(1)
    for hq in range(4): a(f'v_add_f32 {vr(PT+2*hq)}, {vr(PT+2*hq)}, {vr(PT+2*hq+1)}')
    a(f'v_max3_f32 {vr(PT)}, {vr(PT)}, {vr(PT+2)}, {vr(PT+4)}\nv_max_f32 {vr(PT)}, {vr(PT)}, {vr(PT+6)}\nv_mov_b32 v52, {C_QMAX}\nds_max_u32 v52, {vr(PT)}')
    look()
    a(f'{le}:')
    pack(a,PT+16,ACC,32)
    for i in range(4): a(f'ds_write_b128 v42, {vr(PT+16+4*i,4)} offset:{1024*i}')
    stamp(a,5)
    a(f's_cmp_eq_u32 {sr(sKH)}, 0\ns_cbranch_scc0 LG')
    attention(a)
    a('LPUB:')
    l=L('havetag')
    a(f'v_cmp_eq_u32 vcc, 0, v36\ns_cbranch_vccz {l}')
    gettag(a,36)
    a(f'{l}:\nv_mov_b32 v24, v36\nv_mov_b32 v25, v37\ns_mov_b64 exec, 0x8000\nbuffer_store_dwordx4 v[24:27], v27, {sr(R_WS,4)}, {sr(sKVO)} offen sc1\ns_mov_b64 exec, -1')
    stamp(a,3)
    a('s_branch LPUBD')
    a('LG:')
    gwaves(a)
    a('LEND:')
    return a

def kvload(kb):
    b=KV+12*kb
    return [f'buffer_load_dwordx4 {vr(b,4)}, {vr(VK)}, {sr(R_WS,4)}, {sr(sKVO)} offen sc1',
            f's_mov_b64 exec, {sr(sEX,2)}',
            f'buffer_load_dwordx4 {vr(b+4,4)}, {vr(VV)}, {sr(R_WS,4)}, {sr(sKVO)} offen offset:1024 sc1',
            f'buffer_load_dwordx4 {vr(b+8,4)}, {vr(VV)}, {sr(R_WS,4)}, {sr(sKVO)} offen offset:1536 sc1',
            's_mov_b64 exec, -1', f's_add_u32 {sr(sKVO)}, {sr(sKVO)}, 0x800']
def lookloads(a):
    a(f'buffer_load_dwordx2 v[250:251], v249, {sr(R_DBG,4)}, 0 offen sc1')
    for i in range(4): a(f'buffer_load_dwordx4 {vr(SB+4*i,4)}, {vr(VK)}, {sr(R_WS,4)}, {sr(sFL)} offen offset:{1024*i} sc1')
def lookcheck(a):
    a(f'v_cmp_eq_u32 {sr(sT,2) if False else "s[68:69]"}, 0, v250')
    for i in range(4):
        a(f'v_cmp_ne_u64 vcc, {vr(SB+4*i,2)}, v[250:251]\ns_or_b64 s[68:69], s[68:69], vcc')
    a('s_mov_b64 vcc, s[68:69]')
def attention(a):
    a('s_setprio 1')
    a(f'v_mov_b32 {vr(IDX)}, 0xdddddddd')
    a(f'v_and_b32 {vr(VV)}, 15, {vr(vL)}\nv_lshrrev_b32 v243, 5, {vr(vL)}\nv_lshl_add_u32 {vr(VV)}, v243, 4, {vr(VV)}\nv_lshlrev_b32 {vr(VV)}, 4, {vr(VV)}')
    a(f's_mov_b32 {sr(sEX)}, 0xffff\ns_mov_b32 {sr(sEX+1)}, 0xffff\ns_lshl_b32 {sr(sKVO)}, {sr(sW)}, 15')
    a(f'v_and_b32 v243, 27, {vr(vL)}\nv_cmp_eq_u32 vcc, 16, v243\nv_mov_b32 v244, 0x3f803f80\ns_nop 0\nv_cndmask_b32 v243, 0, v244, vcc')
    for kb in range(4):
        for r in range(4,12,2): a(f'v_mov_b32 {vr(KV+12*kb+r)}, v243\nv_mov_b32 {vr(KV+12*kb+r+1)}, v243')
    def firstloads():
        a(f's_lshr_b32 {sr(sT)}, s2, 3\ns_lshl_b32 {sr(sT)}, {sr(sT)}, 2\ns_add_u32 {sr(sT)}, {sr(sT)}, {sr(sW)}\ns_lshl_b32 {sr(sT)}, {sr(sT)}, 10\nv_lshlrev_b32 v244, 7, {vr(vL)}')
        for kb in range(3):
            for x in kvload(kb): a(x)
            if kb==0: a(f's_mov_b64 exec, 0xff\nbuffer_load_dword {vr(vPF)}, v244, {sr(R_WS,4)}, {sr(sT)} offen sc1\ns_mov_b64 exec, -1')
    l1=L('late')
    a(f's_mov_b32 {sr(sCNT)}, 0\ns_waitcnt vmcnt(0)')
    lookcheck(a)
    a(f's_cbranch_vccnz {l1}')
    firstloads()
    a(f's_mov_b32 {sr(sCNT)}, -1\n{l1}:')
    for p in range(4):
        a(f's_add_u32 {sr(sT)}, {sr(sW)}, {p}\ns_and_b32 {sr(sT)}, {sr(sT)}, 3\ns_lshl_b32 {sr(sT)}, {sr(sT)}, 10\ns_add_u32 {sr(sT)}, {sr(sT)}, {slot(0)}\nv_add_u32 {vr(245+p)}, {sr(sT)}, {vr(VK)}')
    a(f'v_mov_b32 v253, {MISC}')
    a('s_waitcnt lgkmcnt(0)')
    for i in range(8):
        for r in range(0,10,2): a(f'v_mov_b64 {vr(O+16*i+r,2)}, 0')
    for r in range(0,16,2): a(f'v_mov_b64 {vr(SB+16+r,2)}, 0')
    a('s_barrier')
    for i in range(8): a(f'ds_read_b128 {vr(Q+4*i,4)}, {vr(245+i//2)} offset:{0 if i%2 else 4*SLOTSZ}')
    a(f'ds_read_b32 v252, v253 offset:{C_QMAX-MISC}')
    l2=L('have'); l3=L('again')
    a(f's_cmp_eq_u32 {sr(sCNT)}, -1\ns_cbranch_scc1 {l2}\n{l3}:')
    lookloads(a)
    a(f's_add_u32 {sr(sCNT)}, {sr(sCNT)}, 1\ns_waitcnt vmcnt(0)')
    lookcheck(a)
    l4=L('go')
    a(f's_cmp_gt_u32 {sr(sCNT)}, {cfg.spin}\ns_cbranch_scc1 {l4}\ns_cbranch_vccz {l4}\ns_sleep 4\ns_branch {l3}\n{l4}:')
    firstloads()
    a(f'{l2}:')
    stamp(a,6)
    a(f'v_max3_u32 v250, {vr(SB+2)}, {vr(SB+6)}, {vr(SB+10)}\nv_max_u32 v250, v250, {vr(SB+14)}')
    for dpp in ('row_shr:1','row_shr:2','row_shr:4','row_shr:8','row_bcast:15','row_bcast:31'):
        a(f's_nop 1\nv_max_u32_dpp v250, v250, v250 {dpp} row_mask:0xf bank_mask:0xf')
    a(f's_nop 1\nv_readlane_b32 {sr(sT)}, v250, 63\ns_nop 0')
    a(f's_waitcnt lgkmcnt(0)\nv_mul_f32 v252, {sr(sT)}, v252\nv_cmp_nge_f32 vcc, {hx(88.0**2)}, v252')
    if cfg.force_slow: a('s_branch LSLOW')
    a('s_cbranch_vccnz LSLOW')
    a('s_waitcnt vmcnt(7)')
    a(MF(SB,KV,Q,'0'))
    a(f's_mov_b32 {sr(sCNT)}, 4')
    a.nop(10)
    if cfg.stamps and cfg.cyc: a(f's_mov_b32 {sr(sST+3)}, {sr(sST)}\ns_mov_b32 {sr(sST+2)}, {sr(sST)}')
    a('.p2align 6\nLATT:')
    for kt in range(4):
        kvc=KV+12*kt; kvn=KV+12*((kt+1)%4); kvp=KV+12*((kt+3)%4)
        for q in range(8):
            i=kt*8+q
            cur=SB+16*(i%2); oth=SB+16*((i+1)%2)
            pq=(q-1)%8; pkv=kvc if q>0 else kvp
            nq=(q+1)%8; nkv=kvc if q<7 else kvn
            e=[f'v_exp_f32 {vr(cur+r)}, {vr(cur+r)}' for r in range(16)]
            ld=[]
            if q==1: ld=kvload((kt+3)%4)
            if q==6:
                ld=['s_waitcnt vmcnt(6)']
                if kt==3: ld+=[f's_sub_u32 {sr(sCNT)}, {sr(sCNT)}, 1', f'ds_read_b32 v252, v253 offset:{C_GD-MISC}']
            if q==6 and cfg.stamps and cfg.cyc:
                ld=['s_memtime s[96:97]','s_waitcnt lgkmcnt(0)']+ld+['s_memtime s[98:99]','s_waitcnt lgkmcnt(0)','s_sub_u32 s98, s98, s96',f's_add_u32 {sr(sST+3)}, {sr(sST+3)}, s98']
            if q==1 and cfg.stamps and cfg.cyc:
                ld=['s_memtime s[96:97]\ns_waitcnt lgkmcnt(0)\n'+ld[0]]+ld[1:5]+[ld[5]+f'\ns_memtime s[98:99]\ns_waitcnt lgkmcnt(0)\ns_sub_u32 s98, s98, s96\ns_add_u32 {sr(sST+2)}, {sr(sST+2)}, s98']
            seq=[SM(O+16*pq,pkv+4,oth,IDX)]+e[0:4]+[SM(O+16*pq,pkv+8,oth+8,IDX)]+e[4:10]+[MF(oth,nkv,Q+4*nq,'0')]
            if q==1: seq+=[ld[0],e[10]]+ld[1:5]+[e[11],ld[5]]+e[12:]
            else: seq+=ld+e[10:]
            for x in seq: a(x)
    if cfg.stamps:
        a(f's_mov_b32 {sr(sST+9)}, {sr(sST+10)}\ns_mov_b32 {sr(sST+10)}, {sr(sST+11)}\ns_mov_b32 {sr(sST+11)}, {sr(sST+12)}'); stamp(a,12)
    a(f's_cmp_lg_u32 {sr(sCNT)}, 0\ns_cbranch_scc1 LATT')
    a('s_waitcnt lgkmcnt(0)')
    a(SM(O+16*7,KV+36+4,SB+16,IDX)); a(SM(O+16*7,KV+36+8,SB+24,IDX))
    a('LCOMB:')
    stamp(a,7)
    CB=slot(0)
    TS=2304
    lw=L('gd')
    a(f'v_cmp_gt_u32 vcc, 4, v252\nv_lshlrev_b32 v243, 2, {vr(vL)}\ns_cbranch_vccz {lw}')
    ldspoll(a,252,253,C_GD-MISC,4)
    a(f'{lw}:')
    for p in range(1,4):
        a(f's_add_u32 {sr(sT)}, {sr(sW)}, {p}\ns_and_b32 {sr(sT)}, {sr(sT)}, 3\ns_mul_i32 {sr(sT)}, {sr(sT)}, {6*TS}\ns_add_u32 {sr(sT)}, {sr(sT)}, {CB+(p-1)*2*TS}')
        a(f'v_add_u32 v244, {sr(sT)}, {vr(VK)}\nv_add_u32 v245, {sr(sT)}, v243')
        for mt in range(2):
            o=O+16*(2*p+mt)
            a(f'ds_write_b128 v244, {vr(o,4)} offset:{mt*TS}\nds_write_b128 v244, {vr(o+4,4)} offset:{mt*TS+1024}\nds_write_b32 v245, {vr(o+8)} offset:{mt*TS+2048}')
    a(f's_mul_i32 {sr(sT)}, {sr(sW)}, {6*TS}\ns_add_u32 {sr(sT)}, {sr(sT)}, {CB}\nv_add_u32 v244, {sr(sT)}, {vr(VK)}\nv_add_u32 v245, {sr(sT)}, v243')
    a(f's_lshl_b32 {sr(sT)}, {sr(sRB)}, 5\ns_lshl_b32 {sr(sT2)}, {sr(sJ)}, 2\ns_add_u32 {sr(sT)}, {sr(sT)}, {sr(sT2)}\ns_add_u32 {sr(sT)}, {sr(sT)}, {sr(sW)}\ns_lshl_b32 {sr(sT)}, {sr(sT)}, 11\ns_add_u32 {sr(sT)}, {sr(sT)}, {WS_O}')
    stamp(a,13)
    a('s_waitcnt lgkmcnt(0)\ns_barrier')
    stamp(a,14)
    T=[128,138,148,208,218,228]
    for mt in range(2):
        for k in range(3):
            b=T[3*mt+k]; o=(2*k+mt)*TS
            a(f'ds_read_b128 {vr(b,4)}, v244 offset:{o}\nds_read_b128 {vr(b+4,4)}, v244 offset:{o+1024}\nds_read_b32 {vr(b+8)}, v245 offset:{o+2048}')
    for mt in range(2):
        R=O+16*mt
        for k in range(3):
            b=T[3*mt+k]
            a(f's_waitcnt lgkmcnt({3*(5-3*mt-k)})')
            for r in range(0,8,2): a(f'v_pk_add_f32 {vr(R+r,2)}, {vr(R+r,2)}, {vr(b+r,2)}')
            a(f'v_add_f32 {vr(R+8)}, {vr(R+8)}, {vr(b+8)}')
        a(f'v_rcp_f32 {vr(R+8)}, {vr(R+8)}\ns_nop 0')
        for r in range(0,8,2): a(f'v_pk_mul_f32 {vr(R+r,2)}, {vr(R+r,2)}, {vr(R+8,2)} op_sel_hi:[1,0]')
        pack(a,R+12,R,8)
        for r in range(4): a(f'v_min_u32 {vr(R+12+r)}, -2, {vr(R+12+r)}')
        a(f'buffer_store_dwordx4 {vr(R+12,4)}, {vr(VK)}, {sr(R_WS,4)}, {sr(sT)} offen offset:{1024*mt} sc1')
    a('s_barrier')
    stamp(a,8)
    dump_stamps(a)
    a('s_endpgm')
    slowpath(a)
def slowpath(a):
    MX=232
    a('LSLOW:')
    a(f'v_mov_b32 v247, 1\nv_mov_b32 v246, {C_S1}\ns_waitcnt vmcnt(0)\ns_mov_b64 exec, 1\nds_add_u32 v246, v247\ns_mov_b64 exec, -1')
    for i in range(8): a(f'v_mov_b32 {vr(MX+i)}, 0xff800000')
    a(f's_lshl_b32 {sr(sKVO)}, {sr(sW)}, 15\ns_mov_b32 {sr(sT3)}, 16\nLS1:')
    a(f'buffer_load_dwordx4 {vr(KV,4)}, {vr(VK)}, {sr(R_WS,4)}, {sr(sKVO)} offen sc1\ns_add_u32 {sr(sKVO)}, {sr(sKVO)}, 0x800\ns_waitcnt vmcnt(0)')
    for q in range(8):
        a(MF(SB,KV,Q+4*q,'0')); a.nop(14)
        for r in range(0,16,2): a(f'v_max3_f32 {vr(MX+q)}, {vr(SB+r)}, {vr(SB+r+1)}, {vr(MX+q)}')
    a(f's_sub_u32 {sr(sT3)}, {sr(sT3)}, 1\ns_cmp_lg_u32 {sr(sT3)}, 0\ns_cbranch_scc1 LS1')
    ldspoll(a,245,246,0,4)
    a(f'v_lshlrev_b32 v243, 2, {vr(vL)}\ns_lshl_b32 {sr(sT)}, {sr(sW)}, 11\ns_and_b32 {sr(sT2)}, {sr(sT)}, 0x800\ns_lshr_b32 {sr(sT)}, {sr(sW)}, 1\ns_mul_i32 {sr(sT)}, {sr(sT)}, {4*SLOTSZ}')
    a(f's_add_u32 {sr(sT)}, {sr(sT)}, {sr(sT2)}\ns_add_u32 {sr(sT3)}, {sr(sT)}, {slot(0)}')
    for p in range(4):
        a(f's_add_u32 {sr(sT)}, {sr(sW)}, {p}\ns_and_b32 {sr(sT)}, {sr(sT)}, 3\ns_lshl_b32 {sr(sT)}, {sr(sT)}, 9\ns_add_u32 {sr(sT2)}, {sr(sT)}, {sr(sT3)}\nv_add_u32 v244, {sr(sT2)}, v243')
        for mt in range(2): a(f'ds_write_b32 v244, {vr(MX+2*p+mt)} offset:{256*mt}')
    a(f's_waitcnt lgkmcnt(0)\ns_mov_b64 exec, 1\nds_add_u32 v246, v247\ns_mov_b64 exec, -1')
    ldspoll(a,245,246,0,8)
    a(f'v_and_b32 v243, 31, {vr(vL)}\nv_lshlrev_b32 v243, 2, v243')
    for p in range(4):
        a(f's_add_u32 {sr(sT)}, {sr(sW)}, {p}\ns_and_b32 {sr(sT)}, {sr(sT)}, 3\ns_lshl_b32 {sr(sT)}, {sr(sT)}, 9\ns_add_u32 {sr(sT)}, {sr(sT)}, {slot(0)}\nv_add_u32 v244, {sr(sT)}, v243')
        for mt in range(2):
            for w in range(4):
                for h in range(2): a(f'ds_read_b32 {vr(SB+2*w+h)}, v244 offset:{(w//2)*4*SLOTSZ+(w%2)*2048+256*mt+128*h}')
            a('s_waitcnt lgkmcnt(0)')
            for r in range(0,8,2): a(f'v_max3_f32 {vr(MX+2*p+mt)}, {vr(MX+2*p+mt)}, {vr(SB+r)}, {vr(SB+r+1)}')
    a(f's_lshl_b32 {sr(sKVO)}, {sr(sW)}, 15\ns_mov_b32 {sr(sT3)}, 16\nLS2:')
    for x in kvload(0): a(x)
    a('s_waitcnt vmcnt(0)')
    for q in range(8):
        a(MF(SB,KV,Q+4*q,'0')); a.nop(14)
        for r in range(16): a(f'v_sub_f32 {vr(SB+r)}, {vr(SB+r)}, {vr(MX+q)}')
        for r in range(16): a(f'v_exp_f32 {vr(SB+r)}, {vr(SB+r)}')
        a.nop(2)
        a(SM(O+16*q,KV+4,SB,IDX)); a(SM(O+16*q,KV+8,SB+8,IDX))
    a.nop(14)
    a(f's_sub_u32 {sr(sT3)}, {sr(sT3)}, 1\ns_cmp_lg_u32 {sr(sT3)}, 0\ns_cbranch_scc1 LS2')
    a(f's_mov_b64 exec, 1\nds_add_u32 v246, v247\ns_mov_b64 exec, -1')
    ldspoll(a,245,246,0,12)
    a('v_mov_b32 v252, 0\ns_branch LCOMB')

def gwaves(a):
    ACC=0; FR=128
    vXA=vXA3; vLA=vLAG
    CST=186
    sW2=sWOFF; sR=sSLOT
    def ringoff(i):
        return (4*SLOTSZ+4096+i*1024) if i<6 else (4096+(i-6)*1024)
    def w2dma(ks):
        out=[]
        for c in range(4):
            i=(ks%3)*4+c
            out.append([f's_add_u32 m0, {sr(sPSLOT)}, {ringoff(i)}', f's_add_u32 {sr(sT)}, {sr(sW2)}, {(c%2)*8192+(c//2)*128}', f'buffer_load_dwordx4 {vr(vD)}, {sr(R_T0,4)}, {sr(sT)} offen lds'])
        adv=[f's_add_u32 {sr(sW2)}, {sr(sW2)}, 16384'] if ks!=11 else [f's_lshl_b32 {sr(sW2)}, {sr(sC3)}, 10', f's_lshl_b32 {sr(sT)}, {sr(sU)}, 8', f's_add_u32 {sr(sW2)}, {sr(sW2)}, {sr(sT)}']
        return out,adv
    def wodma(c): return [f's_add_u32 m0, {sr(sT3)}, {c*1024}','s_nop 0',f'buffer_load_dwordx4 {vr(vD)}, {sr(R_WA,4)}, {sr(sW2)} offen lds',f's_add_u32 {sr(sW2)}, {sr(sW2)}, 8192']
    def w2fill(k0=0,k1=2):
        for ks in range(k0,k1):
            d,adv=w2dma(ks)
            for x in d:
                for y in x: a(y)
            for y in adv: a(y)
    a(f's_lshl_b32 {sr(sW2)}, {sr(sC0)}, 10\ns_lshl_b32 {sr(sT)}, {sr(sU)}, 8\ns_add_u32 {sr(sW2)}, {sr(sW2)}, {sr(sT)}')
    def quarter(src,off):
        a('s_setprio 2')
        gelu(a,src,8,216,CST,False)
        pack(a,216,src,8)
        a(f's_lshl_b32 {sr(sT)}, {sr(sU)}, 10\nv_add_u32 v204, {sr(sT)}, {vr(vH3)}\nds_write_b128 v204, v[216:219]')
        a(f's_waitcnt lgkmcnt(0)\ns_mov_b64 exec, 1\nds_add_u32 v202, v203 offset:{C_H3-MISC}\ns_mov_b64 exec, -1\ns_setprio 0')
    a(f'v_mov_b64 v[176:177], -1\nv_mov_b64 v[178:179], -1\nv_mov_b32 v202, {MISC}\nv_mov_b32 v203, 1\nv_mov_b32 {vr(CST)}, {hx(GC1)}\nv_mov_b32 {vr(CST+2)}, {hx(GC2)}')
    lN=L('gN'); lF=L('ffn2')
    a(f's_cmp_eq_u32 {sr(sU)}, 0\ns_cbranch_scc0 {lN}')
    for r in (193,194,195,45,46,47): a(f'v_mov_b32 {vr(r)}, 0')
    a('v_mov_b32 v44, 0x3f80')
    def r3(s):
        f=FR+12*(s%2); o=(s%8)*1024
        return [f'ds_read_b128 {vr(f,4)}, {vr(vXA)} offset:{s*32}',f'ds_read_b64_tr_b16 {vr(f+8,2)}, {vr(vW3)} offset:{o}',f'ds_read_b64_tr_b16 {vr(f+10,2)}, {vr(vW3)} offset:{o+256}',f'ds_read_b128 {vr(f+4,4)}, {vr(vXA)} offset:{s*32+32*XS}']
    a(f's_lshl_b32 {sr(sWSTEP)}, {sr(sC3)}, 1\ns_add_u32 {sr(sWSTEP)}, {sr(sWSTEP)}, {8*16*3584}')
    for x in r3(0): a(x)
    a(MF(0,192,44,'0')); a(MF(16,192,44,'0'))
    a('s_waitcnt lgkmcnt(0)')
    wpos=max(24,cfg.b3pos)
    for s in range(32):
        f=FR+12*(s%2)
        if 7<=s<31: a(f's_waitcnt vmcnt({(min(s+7,31)-(s+1))+(8 if s>wpos else 0)})')
        a(MF(0,f+8,f))
        if s<31:
            for x in r3(s+1): a(x)
        a(MF(16,f+8,f+4))
        if s+8<32:
            for y in w3dma(s+8): a(y)
        if s==cfg.b3pos: a('s_barrier')
        if s==wpos: w2fill()
        if s<31: a('s_waitcnt lgkmcnt(0)')
    a(f's_setprio 2\nv_add_u32 v204, {R3OFF}, {vr(vLA)}')
    a.nop(9)
    for i in range(2,8): a(f'ds_write_b128 v204, {vr(4*i,4)} offset:{1024*i}')
    a(f's_waitcnt lgkmcnt(0)\nds_write_b32 v202, v203 offset:{C_R3-MISC}')
    quarter(0,0)
    a(f's_branch {lF}\n{lN}:')
    a('s_waitcnt lgkmcnt(0)\ns_barrier')
    w2fill()
    a(f'{lF}:')
    stamp(a,6)
    a(f's_lshl_b32 {sr(sT)}, {sr(sRB)}, 5\ns_lshl_b32 {sr(sT2)}, {sr(sJ)}, 2\ns_add_u32 {sr(sT)}, {sr(sT)}, {sr(sT2)}\ns_add_u32 {sr(sT)}, {sr(sT)}, {sr(sU)}\ns_lshl_b32 {sr(sT)}, {sr(sT)}, 11\ns_add_u32 {sr(sT)}, {sr(sT)}, {WS_O}')
    a(f'buffer_store_dwordx4 v[176:179], {vr(vLA)}, {sr(R_WS,4)}, {sr(sT)} offen sc1\nbuffer_store_dwordx4 v[176:179], {vr(vLA)}, {sr(R_WS,4)}, {sr(sT)} offen offset:1024 sc1')
    def r2(ks):
        f=FR+24*(ks%2); out=[]
        if ks<12:
            ft=ks//2; u=1+ft//2; o=u*SLOTSZ+((ft%2)*2+ks%2)*1024
            out+=[f'ds_read_b128 {vr(f,4)}, {vr(vH0)} offset:{o}', f'ds_read_b128 {vr(f+4,4)}, {vr(vH1)} offset:{o}']
        else:
            out+=[f'ds_read_b128 {vr(f,4)}, {vr(vH3)} offset:{(ks%2)*1024}', f'ds_read_b128 {vr(f+4,4)}, {vr(vH3)} offset:{2048+(ks%2)*1024}']
        for t in range(4):
            o=ringoff((ks%3)*4+(t//2)*2); va=(vA0,vA1)[t%2]
            out+=[f'ds_read_b64_tr_b16 {vr(f+8+4*t,2)}, {vr(va)} offset:{o}', f'ds_read_b64_tr_b16 {vr(f+10+4*t,2)}, {vr(va)} offset:{o+1024}']
        return out
    a('s_waitcnt vmcnt(6)')
    for x in r2(0): a(x)
    w2fill(2,3)
    a('s_waitcnt lgkmcnt(0)')
    for ks in range(14):
        f=FR+24*(ks%2)
        mf=[MF(ACC+16*(2*t+mt),f+8+4*t,f+4*mt,'0' if ks==0 else None) for t in range(4) for mt in range(2)]
        if ks==11:
            l=L('nq')
            a(f's_setprio 2\ns_cmp_eq_u32 {sr(sU)}, 0\ns_cbranch_scc1 {l}')
            ldspoll(a,205,202,C_R3-MISC,1)
            a(f's_lshl_b32 {sr(sT)}, {sr(sU)}, 11\ns_add_u32 {sr(sT)}, {sr(sT)}, {R3OFF}\nv_add_u32 v204, {sr(sT)}, {vr(vLA)}')
            a('ds_read_b128 v[208:211], v204\nds_read_b128 v[212:215], v204 offset:1024\ns_waitcnt lgkmcnt(0)')
            quarter(208,0)
            a(f'{l}:')
            a('s_setprio 2'); ldspoll(a,205,202,C_H3-MISC,4); a('s_setprio 0')
        if ks<13: a(f's_waitcnt vmcnt({6 if ks==0 else 4})')
        rd=r2(ks+1) if ks<13 else []
        if ks+3<14: d,adv=w2dma(ks+3)
        else:
            if ks==11: a(f's_lshl_b32 {sr(sW2)}, {sr(sU)}, 17\ns_lshl_b32 {sr(sT)}, {sr(sJ)}, 7\ns_add_u32 {sr(sW2)}, {sr(sW2)}, {sr(sT)}\ns_lshl_b32 {sr(sT3)}, {sr(sU)}, 14')
            d=[wodma(4*(ks-11)+c) for c in range(4)]; adv=[]
        for i in range(8):
            a(mf[i])
            for x in rd[2*i:2*i+2]: a(x)
            if i>=4 and d:
                for y in d[i-4]: a(y)
        for y in adv: a(y)
        if ks<13: a('s_waitcnt lgkmcnt(0)')
    stamp(a,7)
    a(f's_mov_b64 exec, 1\nds_add_u32 v202, v203 offset:{C_GD-MISC}\ns_mov_b64 exec, -1\ns_setprio 2')
    a(f's_waitcnt vmcnt(4)')
    for c in range(12,16):
        for y in wodma(c): a(y)
    a(f's_lshl_b32 {sr(sT)}, {sr(sRB)}, 3\ns_lshl_b32 {sr(sT2)}, {sr(sU)}, 1\ns_add_u32 {sr(sT)}, {sr(sT)}, {sr(sT2)}\ns_lshl_b32 {sr(sT)}, {sr(sT)}, 3\ns_add_u32 {sr(sT)}, {sr(sT)}, {sr(sJ)}\ns_lshl_b32 {sr(sT)}, {sr(sT)}, 13\ns_add_u32 {sr(sT)}, {sr(sT)}, {WS_P}')
    for t4 in range(4):
        for mt in range(2):
            i=2*t4+mt; p=FR+8*(i%4)
            pack(a,p,ACC+16*i,16)
            if mt==0: a(f's_add_u32 {sr(sT2)}, {sr(sT)}, {(t4//2)*65536+(t4%2)*4096}')
            a(f's_waitcnt vmcnt({cfg.stpace})')
            a(f'buffer_store_dwordx4 {vr(p,4)}, {vr(vLA)}, {sr(R_WS,4)}, {sr(sT2)} offen offset:{mt*2048} sc1\nbuffer_store_dwordx4 {vr(p+4,4)}, {vr(vLA)}, {sr(R_WS,4)}, {sr(sT2)} offen offset:{mt*2048+1024} sc1')
    gettag(a,2)
    a(f's_mov_b64 exec, 1\nds_add_u32 v202, v203 offset:{C_WO-MISC}\ns_mov_b64 exec, -1')
    a(f's_lshl_b32 {sr(sT)}, {sr(sRB)}, 3\ns_add_u32 {sr(sT)}, {sr(sT)}, {sr(sJ)}\ns_lshl_b32 {sr(sT)}, {sr(sT)}, 7\ns_lshl_b32 {sr(sT2)}, {sr(sU)}, 3\ns_add_u32 {sr(sT)}, {sr(sT)}, {sr(sT2)}\ns_add_u32 {sr(sT)}, {sr(sT)}, {WS_F2}')
    a(f's_mov_b64 exec, 1\nbuffer_store_dwordx2 v[2:3], v4, {sr(R_WS,4)}, {sr(sT)} offen sc1\ns_mov_b64 exec, -1')
    stamp(a,8)
    sMT=sWSTEP; sK2=sKVO
    a(f's_and_b32 {sr(sMT)}, {sr(sU)}, 1\ns_lshr_b32 {sr(sK2)}, {sr(sU)}, 1')
    FA=0
    E0=32; E1=36; BA=40; BB=48; XR=52
    LD=112
    srd(a,R_B,P_B2,1024)
    a(f's_lshl_b32 {sr(sT)}, {sr(sK2)}, 20\ns_lshl_b32 {sr(sT2)}, {sr(sJ)}, 7\ns_add_u32 {sr(sT)}, {sr(sT)}, {sr(sT2)}')
    a(f'v_lshrrev_b32 v68, 5, {vr(vL)}\nv_lshlrev_b32 v69, 20, v68\nv_lshl_add_u32 v69, {vr(vL)}, 1, v69')
    a(f'buffer_load_ushort {vr(BA)}, v69, {sr(R_B,4)}, {sr(sT)} offen\nbuffer_load_ushort {vr(BA+4)}, v69, {sr(R_B,4)}, {sr(sT)} offen offset:64')
    a(f'v_and_b32 v70, 31, {vr(vL)}\nv_lshlrev_b32 v71, 10, v70\nv_lshl_add_u32 v71, v68, 3, v71')
    a(f's_lshl_b32 {sr(sT)}, {sr(sRB)}, 16\ns_lshl_b32 {sr(sT3)}, {sr(sMT)}, 15\ns_add_u32 {sr(sT)}, {sr(sT)}, {sr(sT3)}\ns_add_u32 {sr(sT)}, {sr(sT)}, {sr(sT2)}')
    a(f's_mov_b32 {sr(sC0)}, {sr(sT)}\ns_xor_b32 {sr(sT3)}, {sr(sK2)}, 1\ns_lshl_b32 {sr(sT3)}, {sr(sT3)}, 22\ns_add_u32 {sr(sT)}, {sr(sT)}, {sr(sT3)}')
    for t in range(2):
        for hf in range(2):
            for q in range(2): a(f'buffer_load_dwordx2 {vr(XR+8*t+4*hf+2*q,2)}, v71, {sr(R_X,4)}, {sr(sT)} offen offset:{t*64+hf*32+q*16}')
    for r in (BA+1,BA+2,BA+3,BA+5,BA+6,BA+7,BB+1,BB+2,BB+3): a(f'v_mov_b32 {vr(r)}, 0')
    a(f'v_mov_b32 {vr(BB)}, 0x3f80')
    a(f'v_bfe_u32 v72, {vr(vL)}, 2, 1\nv_cmp_eq_u32 vcc, v72, v68\nv_and_b32 v73, 1, {vr(vL)}\nv_lshlrev_b32 v73, 4, v73\nv_mov_b32 v74, 0x3f80\nv_lshlrev_b32 v74, v73, v74\nv_cndmask_b32 v74, 0, v74, vcc')
    a(f'v_bfe_u32 v72, {vr(vL)}, 1, 1\nv_bfe_u32 v73, {vr(vL)}, 3, 2\nv_lshl_add_u32 v72, v73, 1, v72')
    for r in range(8):
        a(f'v_cmp_eq_u32 vcc, {r}, v72\ns_nop 1\nv_cndmask_b32 {vr(E0+r)}, 0, v74, vcc')
    a(f'v_lshrrev_b32 v72, 2, {vr(vL)}\nv_and_b32 v73, 3, {vr(vL)}\nv_lshlrev_b32 v73, 3, v73\nv_lshl_add_u32 v72, v72, 7, v73')
    a(f's_lshl_b32 {sr(sT)}, {sr(sRB)}, 10\ns_add_u32 {sr(sT)}, {sr(sT)}, {WS_F2}')
    l=L('f2'); d=L('f2d')
    a(f's_mov_b32 {sr(sCNT)}, 0\ns_mov_b32 exec_hi, 0\n{l}:\nbuffer_load_dwordx2 v[74:75], v72, {sr(R_WS,4)}, {sr(sT)} offen sc1\ns_add_u32 {sr(sCNT)}, {sr(sCNT)}, 1\ns_waitcnt vmcnt(0)')
    a(f'v_cmp_ne_u64 vcc, {sr(sNON,2)}, v[74:75]\ns_cmp_gt_u32 {sr(sCNT)}, {cfg.spin}\ns_cbranch_scc1 {d}\ns_cbranch_vccz {d}\ns_sleep 8\ns_branch {l}\n{d}:\ns_mov_b64 exec, -1')
    stamp(a,9)
    a(f's_lshl_b32 {sr(sT)}, {sr(sRB)}, 3\ns_add_u32 {sr(sT)}, {sr(sT)}, {sr(sJ)}\ns_lshl_b32 {sr(sT)}, {sr(sT)}, 1\ns_add_u32 {sr(sT)}, {sr(sT)}, {sr(sK2)}\ns_lshl_b32 {sr(sT)}, {sr(sT)}, 15\ns_lshl_b32 {sr(sT2)}, {sr(sMT)}, 11\ns_add_u32 {sr(sT)}, {sr(sT)}, {sr(sT2)}\ns_add_u32 {sr(sT)}, {sr(sT)}, {WS_P}')
    def pload(s):
        for t in range(2):
            a(f's_add_u32 {sr(sT2)}, {sr(sT)}, {s*8192+t*4096}')
            for hf in range(2): a(f'buffer_load_dwordx4 {vr(LD+16*s+8*t+4*hf,4)}, {vr(vLA)}, {sr(R_WS,4)}, {sr(sT2)} offen offset:{hf*1024} sc1')
    pload(0); pload(1)
    a('s_setprio 0')
    for t in range(2): a(MF(FA+16*t,BA+4*t,BB,'0'))
    for hf in range(2):
        for t in range(2): a(MF(FA+16*t,E0+4*hf,XR+8*t+4*hf))
    for s in range(4):
        a(f's_waitcnt vmcnt({4 if s<3 else 0})')
        if s<2: pload(s+2)
        for hf in range(2):
            for t in range(2): a(MF(FA+16*t,E0+4*hf,LD+16*s+8*t+4*hf))
    a('s_setprio 2')
    vLB=240; vOUT=241; vXW=242; vXR=243; vB0=244; vB1=245
    XB=slot(0)+6*2304*4
    a(f's_lshl_b32 {sr(sT)}, {sr(sK2)}, 15\nv_add_u32 {vr(vB0)}, {sr(sT)}, {vr(vTR)}\nv_xor_b32 {vr(vB1)}, 64, {vr(vB0)}\nv_mov_b32 {vr(vLB)}, {vr(vLA)}')
    a(f'v_lshlrev_b32 {vr(vOUT)}, 10, v70\nv_lshl_add_u32 {vr(vOUT)}, v68, 4, {vr(vOUT)}')
    a(f's_lshl_b32 {sr(sT)}, {sr(sU)}, 12\ns_add_u32 {sr(sT)}, {sr(sT)}, {XB}\nv_add_u32 {vr(vXW)}, {sr(sT)}, {vr(vLA)}')
    a(f's_xor_b32 {sr(sT)}, {sr(sU)}, 2\ns_lshl_b32 {sr(sT)}, {sr(sT)}, 12\ns_add_u32 {sr(sT)}, {sr(sT)}, {XB}\nv_add_u32 {vr(vXR)}, {sr(sT)}, {vr(vLA)}')
    srd(a,R_T0,P_OUT,2048*1024)
    a(f's_lshl_b32 {sr(sT)}, {sr(sK2)}, 6\ns_add_u32 {sr(sC0)}, {sr(sT)}, {sr(sC0)}')
    a('v_mov_b32 v246, v202')
    ldspoll(a,247,246,C_WO-MISC,4)
    def WF(i): return 32+8*i if i<10 else 176+8*(i-10)
    for i in range(16):
        f=WF(i); o=i*2048
        a(f'ds_read_b64_tr_b16 {vr(f,2)}, {vr(vB0)} offset:{o}\nds_read_b64_tr_b16 {vr(f+2,2)}, {vr(vB0)} offset:{o+1024}')
        a(f'ds_read_b64_tr_b16 {vr(f+4,2)}, {vr(vB1)} offset:{o}\nds_read_b64_tr_b16 {vr(f+6,2)}, {vr(vB1)} offset:{o+1024}')
    sDN=sT3; sMK=sEX
    a(f's_lshl_b32 {sr(sT)}, {sr(sRB)}, 1\ns_add_u32 {sr(sT)}, {sr(sT)}, {sr(sK2)}\ns_lshl_b32 {sr(sT)}, {sr(sT)}, 15\ns_lshl_b32 {sr(sT2)}, {sr(sMT)}, 10\ns_add_u32 {sr(sT)}, {sr(sT)}, {sr(sT2)}\ns_add_u32 {sr(sT)}, {sr(sT)}, {WS_O}')
    a(f's_mov_b32 {sr(sDN)}, 0\ns_mov_b32 {sr(sCNT)}, 0\ns_mov_b64 {sr(sMK,2)}, -1\ns_waitcnt lgkmcnt(0)')
    stamp(a,10)
    a('s_barrier\ns_barrier')
    a('LOP:')
    for g in range(4):
        l=L('ol')
        a(f's_bitcmp1_b32 {sr(sDN)}, {g}\ns_cbranch_scc1 {l}')
        for i in range(4*g,4*g+4):
            if i%2==0: a(f's_add_u32 {sr(sT2)}, {sr(sT)}, {i*2048}')
            a(f'buffer_load_dwordx4 {vr(LD+4*i,4)}, {vr(vLB)}, {sr(R_WS,4)}, {sr(sT2)} offen offset:{(i%2)*2048} sc1')
        a(f'{l}:')
    a(f's_add_u32 {sr(sCNT)}, {sr(sCNT)}, 1\ns_cmp_gt_u32 {sr(sCNT)}, {cfg.spin}\ns_cselect_b64 {sr(sMK,2)}, 0, -1\ns_waitcnt vmcnt(0)')
    for g in range(4):
        l=L('oc')
        a(f's_bitcmp1_b32 {sr(sDN)}, {g}\ns_cbranch_scc1 {l}')
        for i in range(4*g,4*g+4):
            b=LD+4*i
            a(f'v_max3_u32 {vr(224+i%4)}, {vr(b)}, {vr(b+1)}, {vr(b+2)}')
        a(f'v_max3_u32 v224, v224, {vr(LD+16*g+3)}, {vr(LD+16*g+7)}\nv_max3_u32 v225, v225, {vr(LD+16*g+11)}, {vr(LD+16*g+15)}')
        a(f'v_max3_u32 v224, v224, v225, v226\nv_max_u32 v224, v224, v227\nv_cmp_eq_u32 vcc, -1, v224\ns_and_b64 vcc, vcc, {sr(sMK,2)}\ns_cbranch_vccnz {l}')
        for i in range(4*g,4*g+4):
            a(MF(FA,WF(i),LD+4*i)); a(MF(FA+16,WF(i)+4,LD+4*i))
        a(f's_bitset1_b32 {sr(sDN)}, {g}\n{l}:')
    a(f's_cmp_eq_u32 {sr(sDN)}, 15\ns_cbranch_scc0 LOP')
    stamp(a,11)
    l1=L('k1'); l2=L('kd')
    a(f's_cmp_eq_u32 {sr(sK2)}, 0\ns_cbranch_scc0 {l1}')
    a.nop(7)
    for i in range(4): a(f'ds_write_b128 {vr(vXW)}, {vr(FA+16+4*i,4)} offset:{1024*i}')
    a(f's_branch {l2}\n{l1}:')
    a.nop(5)
    for i in range(4): a(f'ds_write_b128 {vr(vXW)}, {vr(FA+4*i,4)} offset:{1024*i}')
    for i in range(8): a(f'v_mov_b64 {vr(FA+2*i,2)}, {vr(FA+16+2*i,2)}')
    a(f'{l2}:')
    a('s_waitcnt lgkmcnt(0)\ns_barrier')
    for i in range(4): a(f'ds_read_b128 {vr(32+4*i,4)}, {vr(vXR)} offset:{1024*i}')
    for i in range(4):
        a(f's_waitcnt lgkmcnt({3-i})')
        a(f'v_pk_add_f32 {vr(FA+4*i,2)}, {vr(FA+4*i,2)}, {vr(32+4*i,2)}\nv_pk_add_f32 {vr(FA+4*i+2,2)}, {vr(FA+4*i+2,2)}, {vr(32+4*i+2,2)}')
    pack(a,48,FA,16)
    a.nop(2)
    a('v_permlane32_swap_b32 v48, v50\nv_permlane32_swap_b32 v49, v51\nv_permlane32_swap_b32 v52, v54\nv_permlane32_swap_b32 v53, v55')
    a(f'buffer_store_dwordx4 v[48:51], {vr(vOUT)}, {sr(R_T0,4)}, {sr(sC0)} offen\nbuffer_store_dwordx4 v[52:55], {vr(vOUT)}, {sr(R_T0,4)}, {sr(sC0)} offen offset:32')
    stamp(a,12)
    dump_stamps(a)

HEAD=open('cdna_kernels/'+NAME+'.s.ref').read().split('; Override launch')[0]
def full():
    lab[0]=0
    a=build()
    if cfg.doalign: a.lines=align(a.lines)
    w=check(a.lines)
    for x in w: print('HAZARD',x,file=sys.stderr)
    t=HEAD+f'; @launch grid=(256,1,1) block=(512,1,1) lds={LDS_TOTAL}\n'
    t+=f'.amdgcn_target "amdgcn-amd-amdhsa--gfx950"\n.text\n.globl {NAME}_kernel\n.p2align 8\n.type {NAME}_kernel,@function\n{NAME}_kernel:\n'
    t+=a.text()+' s_endpgm\n'
    t+=f'''.section .rodata,"a"
.p2align 6
.amdhsa_kernel {NAME}_kernel
  .amdhsa_next_free_vgpr 256
  .amdhsa_next_free_sgpr 102
  .amdhsa_accum_offset 256
  .amdhsa_group_segment_fixed_size 0
  .amdhsa_kernarg_size 104
  .amdhsa_user_sgpr_count 2
  .amdhsa_user_sgpr_kernarg_segment_ptr 1
  .amdhsa_system_sgpr_workgroup_id_x 1
.end_amdhsa_kernel
'''
    return t
if __name__=='__main__':
    out=sys.argv[1]
    for kv in sys.argv[2:]:
        k,v=kv.split('='); setattr(cfg,k,eval(v))
    open(out,'w').write(full())
```

```python
import sys, math, struct
from asmlib import Asm, vr, sr, check, align
NAME='parallel_sum__grouped_kv_mqa__dense_activation_gelu__prompt'
def f2u(x): return struct.unpack('<I',struct.pack('<f',x))[0]
def hx(x): return hex(f2u(x))

class Cfg:
    stamps=False
    force_slow=False
    b3pos=18
    stpace=2
    late=1
    sp0=3
    lookat=16
    x=''
    pre=4
    doalign=True
    cyc=False
    codebytes=31000
    pf=True
    spin=200000
cfg=Cfg()

XS=1040; XOFF=0
SLOT0=64*XS; SLOTSZ=10240
def slot(i): return SLOT0+i*SLOTSZ
MISC=slot(8)
C_KV=MISC; C_KMAX=MISC+4; C_QMAX=MISC+8; C_H3=MISC+12; C_R3=MISC+16; C_S1=MISC+20; C_GD=MISC+24; C_S0=MISC+28; C_WO=MISC+32
H3OFF=MISC+1024
R3OFF=MISC+5120
LDS_TOTAL=163840
assert R3OFF+8192<=LDS_TOTAL
WS_KV=0
WS_F2=0x80000
WS_F1=0x90000
WS_O =0x100000
WS_P =0x400000
WS_ST=0x1800000
WS_SIZE=0x2000000
P_X,P_WQ,P_WK,P_WV,P_WO,P_BX,P_W1,P_B1=4,6,8,10,12,14,16,18
P_W2,P_B2,P_OUT,P_DBG,P_WS=20,22,24,26,28
sW=30; sRB=31; sJ=3
R_X=32; R_WA=36; R_WS=40; R_DBG=44; R_T0=48; R_T1=52; R_B=56
sU=60; sKH=61; sODD=62; sPROD=63; sSLOT=64; sWOFF=65; sWSTEP=66; sT=67
sT2=68; sT3=69; sCNT=70; sKVO=71; sC0=72; sC3=73; sONES=74; sPSLOT=75
sEX=76
sFL=79
sNON=0
sST=80
sTMP=100
O=0; Q=128; KV=160; SB=208; IDX=240; VK=241; VV=242
vL=255
vPF=254
def srd(a,dst,ptr,nbytes):
    a(f's_mov_b32 {sr(dst)}, {sr(ptr)}\ns_mov_b32 {sr(dst+1)}, {sr(ptr+1)}\ns_mov_b32 {sr(dst+2)}, {nbytes}\ns_mov_b32 {sr(dst+3)}, 0x20000')
def MF(d,A,B,C=None):
    c=vr(d,16) if C is None else C
    return f'v_mfma_f32_32x32x16_bf16 {vr(d,16)}, {vr(A,4)}, {vr(B,4)}, {c}'
def MF16(d,A,B,C=None):
    c=vr(d,4) if C is None else C
    return f'v_mfma_f32_16x16x32_bf16 {vr(d,4)}, {vr(A,4)}, {vr(B,4)}, {c}'
def SM(d,A,B,idx): return f'v_smfmac_f32_32x32x32_bf16 {vr(d,16)}, {vr(A,4)}, {vr(B,8)}, {vr(idx)}'
nstamp=[0]
def stamp(a,i):
    if cfg.stamps:
        a(f's_mem{"" if cfg.cyc else "real"}time s[{sTMP}:{sTMP+1}]\ns_waitcnt lgkmcnt(0)\ns_mov_b32 {sr(sST+i)}, {sr(sTMP)}')
def dump_stamps(a):
    if not cfg.stamps: return
    a('s_waitcnt vmcnt(0) lgkmcnt(0)')
    stamp(a,15)
    for i in range(16): a(f'v_mov_b32 {vr(i)}, {sr(sST+i)}')
    a(f's_lshl_b32 {sr(sT)}, s2, 3\ns_add_u32 {sr(sT)}, {sr(sT)}, {sr(sW)}\ns_lshl_b32 {sr(sT)}, {sr(sT)}, 6\ns_add_u32 {sr(sT)}, {sr(sT)}, {WS_ST}')
    a(f'v_mov_b32 v16, 0\nv_cmp_eq_u32 vcc, 0, {vr(vL)}\ns_and_saveexec_b64 {sr(sEX,2)}, vcc')
    for i in range(4): a(f'buffer_store_dwordx4 {vr(4*i,4)}, v16, {sr(R_WS,4)}, {sr(sT)} offen offset:{16*i}')
    a('s_waitcnt vmcnt(0)')
def gettag(a, v):
    l=L('tag'); d=L('tagd')
    a(f'v_mov_b32 {vr(v+2)}, 0\ns_mov_b32 {sr(sCNT)}, 0\n{l}:')
    a(f'buffer_load_dwordx2 {vr(v,2)}, {vr(v+2)}, {sr(R_DBG,4)}, 0 offen sc1\ns_add_u32 {sr(sCNT)}, {sr(sCNT)}, 1\ns_waitcnt vmcnt(0)')
    a(f'v_readfirstlane_b32 {sr(sNON)}, {vr(v)}\nv_readfirstlane_b32 {sr(sNON+1)}, {vr(v+1)}\ns_cmp_gt_u32 {sr(sCNT)}, {cfg.spin}\ns_cbranch_scc1 {d}')
    a(f's_cmp_lg_u32 {sr(sNON)}, 0\ns_cbranch_scc1 {d}\ns_sleep 2\ns_branch {l}\n{d}:')
lab=[0]
def L(s):
    lab[0]+=1; return f'L{s}_{lab[0]}'
def poll(a, vdst, vaddr, srdreg, soff, nlanes, sleep=1):
    l=L('poll'); d=L('pdone')
    a(f's_mov_b32 {sr(sCNT)}, 0')
    a(f's_mov_b64 exec, {hex((1<<nlanes)-1)}' if nlanes<=16 or nlanes==64 else f's_mov_b32 exec_lo, {hex((1<<nlanes)-1)}\ns_mov_b32 exec_hi, 0')
    a(f'{l}:')
    a(f'buffer_load_dword {vr(vdst)}, {vr(vaddr)}, {sr(srdreg,4)}, {soff} offen sc1')
    a(f's_add_u32 {sr(sCNT)}, {sr(sCNT)}, 1\ns_waitcnt vmcnt(0)')
    a(f'v_cmp_eq_u32 vcc, 0, {vr(vdst)}\ns_cmp_gt_u32 {sr(sCNT)}, {cfg.spin}\ns_cbranch_scc1 {d}\ns_cbranch_vccz {d}\ns_sleep {sleep}\ns_branch {l}\n{d}:')
    a('s_mov_b64 exec, -1')
def ldspoll(a, vdst, vaddr, off, val):
    l=L('lp'); d=L('lpd')
    a(f's_mov_b32 {sr(sCNT)}, 0\n{l}:\nds_read_b32 {vr(vdst)}, {vr(vaddr)} offset:{off}\ns_add_u32 {sr(sCNT)}, {sr(sCNT)}, 1\ns_waitcnt lgkmcnt(0)')
    a(f'v_cmp_gt_u32 vcc, {val}, {vr(vdst)}\ns_cmp_gt_u32 {sr(sCNT)}, {cfg.spin*8}\ns_cbranch_scc1 {d}\ns_cbranch_vccz {d}\ns_sleep 1\ns_branch {l}\n{d}:')

GC1=-2.0*math.sqrt(2/math.pi)*math.log2(math.e); GC2=GC1*0.044715
def gelu(a, src, n, tmp, cst, packed):
    for b in range(0,n,8):
        s=src+b; t=tmp
        if packed:
            for i in range(0,8,2): a(f'v_pk_mul_f32 {vr(t+i,2)}, {vr(s+i,2)}, {vr(s+i,2)}')
            for i in range(0,8,2): a(f'v_pk_fma_f32 {vr(t+i,2)}, {vr(t+i,2)}, {vr(cst+2,2)}, {vr(cst,2)}')
            for i in range(0,8,2): a(f'v_pk_mul_f32 {vr(t+i,2)}, {vr(t+i,2)}, {vr(s+i,2)}')
            for i in range(8): a(f'v_exp_f32 {vr(t+i)}, {vr(t+i)}')
            for i in range(0,8,2): a(f'v_pk_add_f32 {vr(t+i,2)}, {vr(t+i,2)}, {vr(cst+4,2)}')
            for i in range(8): a(f'v_rcp_f32 {vr(t+i)}, {vr(t+i)}')
            for i in range(0,8,2): a(f'v_pk_mul_f32 {vr(s+i,2)}, {vr(s+i,2)}, {vr(t+i,2)}')
        else:
            for i in range(8): a(f'v_mul_f32 {vr(t+i)}, {vr(s+i)}, {vr(s+i)}')
            for i in range(8): a(f'v_fma_f32 {vr(t+i)}, {vr(t+i)}, {vr(cst+2)}, {vr(cst)}')
            for i in range(8): a(f'v_mul_f32 {vr(t+i)}, {vr(t+i)}, {vr(s+i)}')
            for i in range(8): a(f'v_exp_f32 {vr(t+i)}, {vr(t+i)}')
            for i in range(8): a(f'v_add_f32 {vr(t+i)}, 1.0, {vr(t+i)}')
            for i in range(8): a(f'v_rcp_f32 {vr(t+i)}, {vr(t+i)}')
            for i in range(8): a(f'v_mul_f32 {vr(s+i)}, {vr(s+i)}, {vr(t+i)}')
def pack(a,dst,src,n):
    for i in range(n//2): a(f'v_cvt_pk_bf16_f32 {vr(dst+i)}, {vr(src+2*i)}, {vr(src+2*i+1)}')

def tr_addr(a, dst, t0, t1, rowexpr, rowbytes, swz):
    a(f'v_and_b32 {vr(t0)}, 15, {vr(vL)}\nv_lshrrev_b32 {vr(t0)}, 2, {vr(t0)}')
    a(f'v_lshrrev_b32 {vr(t1)}, 5, {vr(vL)}')
    mul={'chunk':8,'h4':4,'h8':8}[rowexpr]
    a(f'v_lshl_add_u32 {vr(dst)}, {vr(t1)}, {int(math.log2(mul))}, {vr(t0)}')
    a(f'v_lshlrev_b32 {vr(dst)}, {int(math.log2(rowbytes))}, {vr(dst)}')
    a(f'v_and_b32 {vr(t1)}, 3, {vr(vL)}\nv_lshl_add_u32 {vr(dst)}, {vr(t1)}, 3, {vr(dst)}')
    a(f'v_bfe_u32 {vr(t1)}, {vr(vL)}, 4, 1\nv_lshl_add_u32 {vr(dst)}, {vr(t1)}, 5, {vr(dst)}')
    if swz:
        a(f'v_bfe_u32 {vr(t1)}, {vr(vL)}, 3, 1\nv_lshlrev_b32 {vr(t1)}, 6, {vr(t1)}\nv_xor_b32 {vr(dst)}, {vr(dst)}, {vr(t1)}')
def line_voff(a,dst,t0,t1,stride_sgpr_or_imm):
    a(f'v_lshrrev_b32 {vr(t0)}, 3, {vr(vL)}')
    a(f'v_mul_lo_u32 {vr(dst)}, {vr(t0)}, {stride_sgpr_or_imm}')
    a(f'v_bfe_u32 {vr(t0)}, {vr(vL)}, 4, 1\nv_lshlrev_b32 {vr(t0)}, 2, {vr(t0)}')
    a(f'v_and_b32 {vr(t1)}, 7, {vr(vL)}\nv_xor_b32 {vr(t1)}, {vr(t1)}, {vr(t0)}')
    a(f'v_lshl_add_u32 {vr(dst)}, {vr(t1)}, 4, {vr(dst)}')
def dma(a, ldsexpr, vaddr, srdreg, soff):
    s,imm=ldsexpr
    if s is None: a(f's_mov_b32 m0, {imm}')
    else: a(f's_add_u32 m0, {sr(s)}, {imm}')
    return f'buffer_load_dwordx4 {vr(vaddr)}, {sr(srdreg,4)}, {soff} offen lds'

vW3D=198
vH0=228; vH1=229; vA0=230; vA1=231; vD=232; vH3=233; vXA3=234; vW3=235; vLAG=236; vTR=237; vT2=238; vTO=239
def wkvoff(i): return MISC+1024+i*1024 if i<14 else slot(7)+8192+(i-14)*1024
def w3dma(s): return [f's_mov_b32 m0, {R3OFF+(s%8)*1024}', 's_nop 0', f'buffer_load_dwordx4 {vr(vW3D)}, {sr(R_T1,4)}, {sr(sWSTEP)} offen lds', f's_add_u32 {sr(sWSTEP)}, {sr(sWSTEP)}, {16*3584}']
def build():
    a=Asm()
    a(f's_cmp_ge_u32 s2, 256\ns_cbranch_scc1 LEND')
    if cfg.stamps:
        for i in range(16): a(f's_mov_b32 {sr(sST+i)}, 0')
    stamp(a,0)
    a(f's_load_dwordx16 s[4:19], s[0:1], 0\ns_load_dwordx8 s[20:27], s[0:1], 64\ns_load_dwordx2 s[28:29], s[0:1], 96')
    a(f'v_lshrrev_b32 v1, 6, v0\nv_and_b32 {vr(vL)}, 63, v0\nv_readfirstlane_b32 {sr(sW)}, v1')
    a(f's_and_b32 {sr(sT)}, s2, 7\ns_lshr_b32 {sr(sT2)}, s2, 3')
    a(f's_and_b32 {sr(sRB)}, {sr(sT)}, 3\ns_lshl_b32 {sr(sRB)}, {sr(sRB)}, 3\ns_and_b32 {sr(sT3)}, {sr(sT2)}, 7\ns_add_u32 {sr(sRB)}, {sr(sRB)}, {sr(sT3)}')
    a(f's_lshr_b32 {sr(sJ)}, {sr(sT)}, 2\ns_lshl_b32 {sr(sJ)}, {sr(sJ)}, 2\ns_lshr_b32 {sr(sT3)}, {sr(sT2)}, 3\ns_add_u32 {sr(sJ)}, {sr(sJ)}, {sr(sT3)}')
    sRG=sKVO; sXO=sT3; sBO=sFL; sSTR=sEX
    vXO=40; XR=64
    a(f's_lshl_b32 {sr(sRG)}, {sr(sJ)}, 1\ns_add_u32 {sr(sRG)}, {sr(sRG)}, {sr(sW)}\ns_and_b32 {sr(sRG)}, {sr(sRG)}, 7')
    a(f'v_lshrrev_b32 v2, 3, {vr(vL)}\nv_and_b32 v3, 7, {vr(vL)}\nv_lshlrev_b32 v3, 4, v3\nv_lshl_add_u32 {vr(vXO)}, v2, 10, v3')
    a(f's_lshl_b32 {sr(sXO)}, {sr(sRB)}, 16\ns_lshl_b32 {sr(sT2)}, {sr(sRG)}, 13\ns_add_u32 {sr(sXO)}, {sr(sXO)}, {sr(sT2)}')
    a(f's_mov_b32 {sr(R_X+2)}, {2048*1024}\ns_mov_b32 {sr(R_X+3)}, 0x20000\ns_mov_b32 {sr(R_T1+3)}, 0x20000')
    a(f's_and_b32 {sr(sODD)}, {sr(sJ)}, 1\ns_and_b32 {sr(sCNT)}, {sr(sRB)}, 7')
    lx=L('xl'); l1=L('t1'); l2=L('t2'); l3=L('t3'); lt=L('tgo')
    a(f's_cmp_lt_u32 {sr(sW)}, 4\ns_cbranch_scc0 {lx}\ns_cmp_lt_u32 {sr(sW)}, 2\ns_cbranch_scc0 {l2}')
    a(f'v_mul_u32_u24 v4, 13, {vr(vL)}\nv_lshrrev_b32 v4, 8, v4\nv_mul_u32_u24 v5, 20, v4\nv_sub_u32 v5, {vr(vL)}, v5\nv_cmp_lt_u32 vcc, 9, v5\nv_lshl_add_u32 v5, v5, 3, {sr(sCNT)}\nv_add_u32 v6, 176, v5\nv_cndmask_b32 v5, v5, v6, vcc')
    a(f's_cmp_eq_u32 {sr(sW)}, 0\ns_cbranch_scc0 {l1}')
    a(f'v_mul_u32_u24 v5, 3584, v5\nv_lshl_add_u32 v5, v4, 7, v5\ns_mul_i32 {sr(sT)}, {sr(sJ)}, 448\ns_lshl_b32 {sr(sT2)}, {sr(sODD)}, 6\ns_add_u32 {sr(sT)}, {sr(sT)}, {sr(sT2)}')
    a(f's_mov_b32 {sr(R_T1+2)}, {512*3584}\ns_mov_b32 exec_hi, 0xfffffff\ns_waitcnt lgkmcnt(0)\ns_mov_b64 {sr(R_T1,2)}, {sr(P_W1,2)}\ns_branch {lt}\n{l1}:')
    a(f'v_lshlrev_b32 v5, 10, v5\ns_lshl_b32 {sr(sT)}, {sr(sJ)}, 7\ns_mov_b32 {sr(R_T1+2)}, {512*1024}\ns_mov_b64 exec, 0xfffff\ns_waitcnt lgkmcnt(0)\ns_mov_b64 {sr(R_T1,2)}, {sr(P_WQ,2)}\ns_branch {lt}\n{l2}:')
    a(f'v_lshlrev_b32 v5, 7, {vr(vL)}\ns_cmp_eq_u32 {sr(sW)}, 2\ns_cbranch_scc0 {l3}')
    a(f's_lshl_b32 {sr(sT)}, {sr(sCNT)}, 11\ns_mov_b32 {sr(R_T1+2)}, 16384\ns_mov_b64 exec, 0xffff\ns_cmp_eq_u32 {sr(sODD)}, 0\ns_waitcnt lgkmcnt(0)\ns_cselect_b32 {sr(R_T1)}, {sr(P_WK)}, {sr(P_WV)}\ns_cselect_b32 {sr(R_T1+1)}, {sr(P_WK+1)}, {sr(P_WV+1)}\ns_branch {lt}\n{l3}:')
    a(f's_lshr_b32 {sr(sT)}, s2, 3\ns_lshl_b32 {sr(sT)}, {sr(sT)}, 10\ns_mov_b32 {sr(R_T1+2)}, {cfg.codebytes}\ns_mov_b64 exec, 0xff\ns_waitcnt lgkmcnt(0)\ns_getpc_b64 {sr(R_T1,2)}')
    a(f'{lt}:\nbuffer_load_dword {vr(vPF)}, v5, {sr(R_T1,4)}, {sr(sT)} offen\ns_mov_b64 exec, -1\ns_mov_b64 {sr(R_X,2)}, {sr(P_X,2)}')
    def xloads():
        for i in range(8): a(f'buffer_load_dwordx4 {vr(XR+4*i,4)}, {vr(vXO)}, {sr(R_X,4)}, {sr(sXO)} offen offset:{128*i}')
    xloads()
    a(f'{lx}:\ns_waitcnt lgkmcnt(0)\ns_mov_b64 {sr(R_X,2)}, {sr(P_X,2)}')
    a(f's_and_b32 {sr(sU)}, {sr(sW)}, 3\ns_lshr_b32 {sr(sKH)}, {sr(sW)}, 2')
    a(f's_cmp_eq_u32 {sr(sW)}, 7\ns_cselect_b32 {sr(sPROD)}, 1, 0')
    vWD=41; vW0=42; vW1=43; vXA=44; vPA=45; vZ=47
    vBA0=50; vBA1=54; vBB=58
    a(f's_mul_i32 {sr(sC0)}, {sr(sJ)}, 224\ns_lshl_b32 {sr(sT)}, {sr(sODD)}, 5\ns_mul_i32 {sr(sT2)}, {sr(sODD)}, 192')
    a(f's_add_u32 {sr(sC3)}, {sr(sC0)}, 192\ns_sub_u32 {sr(sC3)}, {sr(sC3)}, {sr(sT2)}\ns_add_u32 {sr(sC0)}, {sr(sC0)}, {sr(sT)}')
    a(f's_cmp_eq_u32 {sr(sU)}, 0\ns_cselect_b32 {sr(R_WA)}, {sr(P_WQ)}, {sr(P_W1)}\ns_cselect_b32 {sr(R_WA+1)}, {sr(P_WQ+1)}, {sr(P_W1+1)}')
    a(f's_mov_b32 {sr(sSTR)}, 3584\ns_cselect_b32 {sr(sSTR)}, 1024, {sr(sSTR)}\ns_lshl_b32 {sr(R_WA+2)}, {sr(sSTR)}, 9\ns_mov_b32 {sr(R_WA+3)}, 0x20000')
    a(f's_lshl_b32 {sr(sWSTEP)}, {sr(sSTR)}, 3')
    a(f's_lshl_b32 {sr(sT)}, {sr(sJ)}, 7')
    a(f's_lshl_b32 {sr(sBO)}, {sr(sU)}, 6\ns_add_u32 {sr(sBO)}, {sr(sBO)}, {sr(sC0)}\ns_sub_u32 {sr(sBO)}, {sr(sBO)}, 64')
    a(f's_lshl_b32 {sr(sWOFF)}, {sr(sBO)}, 1\ns_cmp_eq_u32 {sr(sU)}, 0\ns_cselect_b32 {sr(sWOFF)}, {sr(sT)}, {sr(sWOFF)}')
    a(f's_mul_i32 {sr(sT)}, {sr(sWSTEP)}, 32\ns_mul_i32 {sr(sT)}, {sr(sT)}, {sr(sKH)}\ns_add_u32 {sr(sWOFF)}, {sr(sWOFF)}, {sr(sT)}')
    srd(a,R_B,P_B1,3584)
    a(f's_cmp_eq_u32 {sr(sU)}, 0\ns_cselect_b32 {sr(sT)}, 1, {sr(sKH)}\ns_lshl_b32 {sr(sT)}, {sr(sT)}, 20')
    a(f's_lshl_b32 {sr(sBO)}, {sr(sBO)}, 1\ns_and_b32 {sr(sBO)}, {sr(sBO)}, 0xffff\ns_add_u32 {sr(sBO)}, {sr(sBO)}, {sr(sT)}')
    a(f'v_lshrrev_b32 v2, 5, {vr(vL)}\nv_lshlrev_b32 v2, 20, v2\nv_lshl_add_u32 v2, {vr(vL)}, 1, v2')
    a('v_mov_b32 v39, v2')
    a(f's_and_b32 {sr(sT)}, {sr(sRB)}, 7\nv_lshl_add_u32 {vr(vPA)}, {vr(vL)}, 3, {sr(sT)}\nv_mul_lo_u32 v3, {vr(vPA)}, {sr(sSTR)}')
    a(f's_cmp_eq_u32 {sr(sODD)}, 0\ns_cselect_b32 {sr(R_T0)}, {sr(P_WK)}, {sr(P_WV)}\ns_cselect_b32 {sr(R_T0+1)}, {sr(P_WK+1)}, {sr(P_WV+1)}\ns_mov_b32 {sr(R_T0+2)}, 16384\ns_mov_b32 {sr(R_T0+3)}, 0x20000')
    NY=0
    a(f's_mul_i32 {sr(sSLOT)}, {sr(sW)}, {SLOTSZ}\ns_add_u32 {sr(sSLOT)}, {sr(sSLOT)}, {SLOT0}')
    a(f's_xor_b32 {sr(sT)}, {sr(sW)}, 4\ns_mul_i32 {sr(sPSLOT)}, {sr(sT)}, {SLOTSZ}\ns_add_u32 {sr(sPSLOT)}, {sr(sPSLOT)}, {SLOT0}')
    srd(a,R_DBG,P_DBG,256); srd(a,R_T1,P_W1,512*3584)
    line_voff(a,vWD,2,38,sr(sSTR))
    srd(a,R_WS,P_WS,WS_SIZE)
    a(f'v_mov_b32 {vr(vZ)}, 0\nv_lshlrev_b32 v2, 2, {vr(vL)}\nv_add_u32 v2, {MISC}, v2\nds_write_b32 v2, {vr(vZ)}')
    tr_addr(a,vW0,2,38,'chunk',128,True)
    a(f'v_add_u32 {vr(vW0)}, {sr(sSLOT)}, {vr(vW0)}\nv_xor_b32 {vr(vW1)}, 64, {vr(vW0)}')
    a(f'v_and_b32 v2, 31, {vr(vL)}\nv_mul_u32_u24 {vr(vXA)}, {XS}, v2\nv_lshrrev_b32 v2, 5, {vr(vL)}\nv_lshl_add_u32 {vr(vXA)}, v2, 4, {vr(vXA)}')
    a(f'v_mov_b32 {vr(vXA3)}, {vr(vXA)}\ns_lshl_b32 {sr(sT)}, {sr(sKH)}, 9\nv_add_u32 {vr(vXA)}, {sr(sT)}, {vr(vXA)}')
    a(f'v_lshlrev_b32 {vr(vLAG)}, 4, {vr(vL)}')
    a(f'v_add_u32 {vr(vH0)}, {slot(4)}, {vr(vLAG)}\nv_add_u32 {vr(vH1)}, {slot(0)}, {vr(vLAG)}\nv_add_u32 {vr(vH3)}, {H3OFF}, {vr(vLAG)}')
    tr_addr(a,vTR,2,38,'h4',128,True)
    a(f'v_add_u32 {vr(vA0)}, {sr(sPSLOT)}, {vr(vTR)}\nv_xor_b32 {vr(vA1)}, 64, {vr(vA0)}')
    a(f's_mov_b32 {sr(sT2)}, 1024'); line_voff(a,vD,2,38,sr(sT2))
    tr_addr(a,vW3,2,38,'h8',64,False)
    a(f'v_add_u32 {vr(vW3)}, {R3OFF}, {vr(vW3)}')
    a(f'v_lshrrev_b32 {vr(vT2)}, 1, {vr(vL)}\nv_lshlrev_b32 {vr(vT2)}, 13, {vr(vT2)}\nv_and_b32 v2, 1, {vr(vL)}\nv_lshl_add_u32 {vr(vT2)}, v2, 7, {vr(vT2)}\nv_lshlrev_b32 {vr(vTO)}, 13, {vr(vL)}')
    a(f'v_lshrrev_b32 v2, 2, {vr(vL)}\nv_mul_u32_u24 {vr(vW3D)}, 3584, v2\nv_and_b32 v2, 3, {vr(vL)}\nv_lshl_add_u32 {vr(vW3D)}, v2, 4, {vr(vW3D)}')
    a(f's_mov_b32 {sr(sONES)}, 0x3f803f80')
    for r in (vBA0+1,vBA0+2,vBA0+3,vBA1+1,vBA1+2,vBA1+3,vBB+1,vBB+2,vBB+3): a(f'v_mov_b32 {vr(r)}, 0')
    a(f'v_mov_b32 {vr(vBB)}, 0x3f80')
    vXW=48
    a(f'v_lshrrev_b32 v2, 3, {vr(vL)}\ns_lshl_b32 {sr(sT)}, {sr(sRG)}, 3\nv_add_u32 v2, {sr(sT)}, v2\nv_mul_u32_u24 v2, {XS}, v2\nv_and_b32 v38, 7, {vr(vL)}\nv_lshl_add_u32 {vr(vXW)}, v38, 4, v2')
    for i in range(4): a(f'v_mov_b32 {vr(4+i)}, 0')
    def ringfill(c0,c1):
        for c in range(c0,c1):
            x=dma(a,(sSLOT,c*1024),vWD,R_WA,sr(sWOFF)); a('s_nop 0'); a(x); a(f's_add_u32 {sr(sWOFF)}, {sr(sWOFF)}, {sr(sWSTEP)}')
    l=L('nxb')
    a(f's_cmp_eq_u32 {sr(sKH)}, 0\ns_cbranch_scc1 {l}')
    lA=L('nottag')
    a(f's_lshl_b32 {sr(sT)}, s2, 3\ns_add_u32 {sr(sT)}, {sr(sT)}, {sr(sW)}\ns_cmp_eq_u32 {sr(sT)}, 7\ns_cbranch_scc0 {lA}')
    a(f's_memrealtime s[0:1]\nv_mov_b32 v38, 0\ns_waitcnt lgkmcnt(0)\ns_or_b32 s0, s0, 1\nv_mov_b32 v36, s0\nv_mov_b32 v37, s1')
    a(f's_mov_b64 exec, 1\nbuffer_store_dwordx2 v[36:37], v38, {sr(R_DBG,4)}, 0 offen sc1\ns_mov_b64 exec, -1')
    a(f'{lA}:')
    xloads()
    stamp(a,14)
    a(f's_barrier\n{l}:')
    def stats(waits):
        for i in range(32):
            if i%4==0 and waits: a(f's_waitcnt vmcnt({NY+7-i//4})')
            if i==28: stamp(a,1)
            a(f'v_dot2_f32_bf16 {vr(4+i%2)}, {vr(XR+i)}, {sr(sONES)}, {vr(4+i%2)}')
            a(f'v_dot2_f32_bf16 {vr(6+i%2)}, {vr(XR+i)}, {vr(XR+i)}, {vr(6+i%2)}')
    stats(True)
    a.nop(2)
    a.nop(1)
    a('v_add_f32 v4, v4, v5\nv_add_f32 v6, v6, v7')
    for dpp in ('quad_perm:[1,0,3,2]','quad_perm:[2,3,0,1]','row_half_mirror'):
        a.nop(1)
        a(f'v_add_f32_dpp v4, v4, v4 {dpp} row_mask:0xf bank_mask:0xf\nv_add_f32_dpp v6, v6, v6 {dpp} row_mask:0xf bank_mask:0xf')
    a(f'v_mul_f32 v4, {hx(1/512)}, v4\nv_mul_f32 v6, {hx(1/512)}, v6')
    a(f'v_fma_f32 v6, -v4, v4, v6\nv_max_f32 v6, 0, v6\nv_add_f32 v6, {hx(1e-5)}, v6\nv_rsq_f32 v8, v6')
    l=L('nfill')
    a(f's_cmp_eq_u32 {sr(sKH)}, 0\ns_cbranch_scc0 {l}\ns_barrier')
    a(f's_mov_b32 {sr(sC0+0) if False else sr(sONES)}, {sr(sBO)}')
    a(f'v_bfe_u32 v12, {vr(vL)}, 3, 1\nv_bfe_u32 v13, {vr(vL)}, 4, 1\nv_xor_b32 v12, v12, v13\nv_mul_u32_u24 v12, 24, v12\nv_xor_b32 v12, v12, {vr(vL)}\nv_lshlrev_b32 v12, 4, v12')
    a(f's_lshl_b32 {sr(sT)}, {sr(sWSTEP)}, 5\ns_add_u32 {sr(sFL)}, {sr(sWOFF)}, {sr(sT)}')
    for p in range(cfg.pre):
        ringfill(2*p,2*p+2)
        for c in (2*p,2*p+1):
            a(f's_add_u32 m0, {sr(sPSLOT)}, {c*1024}\ns_nop 0\nbuffer_load_dwordx4 {vr(vWD)}, {sr(R_WA,4)}, {sr(sFL)} offen lds\ns_add_u32 {sr(sFL)}, {sr(sFL)}, {sr(sWSTEP)}')
        if p==0:
            a(f's_lshl_b32 {sr(sT)}, {sr(sU)}, 12\ns_add_u32 {sr(sT2)}, {sr(sT)}, {wkvoff(0)}\ns_add_u32 {sr(sT3)}, {sr(sT2)}, 2048\ns_cmp_eq_u32 {sr(sU)}, 3\ns_cselect_b32 {sr(sT3)}, {wkvoff(14)}, {sr(sT3)}')
            for i in range(4):
                a(f's_add_u32 m0, {sr(sT2 if i<2 else sT3)}, {(i%2)*1024}\ns_add_u32 {sr(sCNT)}, {sr(sT)}, {i*1024}\nbuffer_load_dwordx4 v12, {sr(R_T0,4)}, {sr(sCNT)} offen lds')
    a(f'buffer_load_ushort {vr(vBA0)}, v39, {sr(R_B,4)}, {sr(sONES)} offen\nbuffer_load_ushort {vr(vBA1)}, v39, {sr(R_B,4)}, {sr(sONES)} offen offset:64')
    a(f's_mul_i32 {sr(sT)}, {sr(sWSTEP)}, {10-2*cfg.pre}\ns_add_u32 {sr(sT2)}, {sr(sT)}, {sr(sWOFF)}\ns_add_u32 {sr(sT)}, {sr(sT)}, {sr(sFL)}')
    a(f's_mov_b64 exec, 0x3fffff\nbuffer_load_dword {vr(vPF)}, v3, {sr(R_WA,4)}, {sr(sT2)} offen\nbuffer_load_dword {vr(vPF)}, v3, {sr(R_WA,4)}, {sr(sT)} offen')
    a(f's_lshl_b32 {sr(sT)}, {sr(sU)}, 7\ns_mov_b64 exec, 0xffff\nv_add_u32 v46, {sr(sT)}, {vr(vPA)}\nv_mul_u32_u24 v46, 3584, v46\ns_lshl_b32 {sr(sT2)}, {sr(sC3)}, 1')
    a(f'buffer_load_dword {vr(vPF)}, v46, {sr(R_T1,4)}, {sr(sT2)} offen\ns_mov_b64 exec, -1')
    l2=L('filld')
    a(f's_branch {l2}\n{l}:\ns_mul_i32 {sr(sT)}, {sr(sWSTEP)}, {2*cfg.pre}\ns_add_u32 {sr(sWOFF)}, {sr(sWOFF)}, {sr(sT)}')
    a(f's_lshl_b32 {sr(sT)}, {sr(sC3)}, 1\nbuffer_load_ushort v192, v39, {sr(R_B,4)}, {sr(sT)} offen\n{l2}:')
    a('v_mul_f32 v10, v4, v8\nv_mov_b32 v9, v8\nv_sub_f32 v10, 0, v10\nv_mov_b32 v11, v10')
    for i in range(8):
        t=12+8*(i%2)
        for k in range(4):
            a(f'v_lshlrev_b32 {vr(t+2*k)}, 16, {vr(XR+4*i+k)}\nv_and_b32 {vr(t+2*k+1)}, 0xffff0000, {vr(XR+4*i+k)}')
        for k in range(4): a(f'v_pk_fma_f32 {vr(t+2*k,2)}, {vr(t+2*k,2)}, v[8:9], v[10:11]')
        for k in range(4): a(f'v_cvt_pk_bf16_f32 {vr(XR+4*i+k)}, {vr(t+2*k)}, {vr(t+2*k+1)}')
        a(f'ds_write_b128 {vr(vXW)}, {vr(XR+4*i,4)} offset:{128*i}')
    a('s_waitcnt vmcnt(5) lgkmcnt(0)')
    stamp(a,2)
    a('s_barrier')
    lP=L('p1'); lP2=L('p1b')
    ringfill(2*cfg.pre,8)
    a(f's_cmp_lg_u32 {sr(sPROD)}, 0\ns_cbranch_scc0 {lP2}')
    a('s_setprio 2')
    vx=2; vw=30; vw2=31; FX=64; DK=224; NS=6
    a(f'v_and_b32 v28, 15, {vr(vL)}\nv_lshrrev_b32 v29, 4, {vr(vL)}\ns_lshr_b32 {sr(sT3)}, {sr(sJ)}, 1')
    a(f's_lshl_b32 {sr(sT)}, {sr(sT3)}, 4\nv_add_u32 v5, {sr(sT)}, v28\nv_mul_u32_u24 {vr(vx)}, {XS}, v5\nv_lshl_add_u32 {vr(vx)}, v29, 4, {vr(vx)}')
    a(f'v_and_b32 v21, 1, v29\nv_lshrrev_b32 v22, 1, v29\nv_lshlrev_b32 v30, 3, v28\nv_lshl_add_u32 v30, v21, 7, v30\nv_lshl_add_u32 v30, v22, 9, v30')
    a(f'v_add_u32 {vr(vw2)}, {wkvoff(14)}, v30\nv_add_u32 {vr(vw)}, {wkvoff(0)}, v30')
    a(f'v_mov_b32 v38, 0\nbuffer_load_dwordx2 v[36:37], v38, {sr(R_DBG,4)}, 0 offen sc1')
    def kvread(s_):
        f=FX+8*(s_%NS)
        a(f'ds_read_b128 {vr(f,4)}, {vr(vx)} offset:{s_*64}')
        for q in range(2): a(f'ds_read_b64_tr_b16 {vr(f+4+2*q,2)}, {vr(vw if s_<14 else vw2)} offset:{(s_ if s_<14 else s_-14)*1024+q*256}')
    for s_ in range(5): kvread(s_)
    lv=L('vt'); ld=L('kvd')
    a(f's_cmp_eq_u32 {sr(sODD)}, 0\ns_cbranch_scc0 {lv}')
    for isv in range(2):
        for s_ in range(16):
            f=FX+8*(s_%NS)
            a(f's_waitcnt lgkmcnt({3*min(4,15-s_)})')
            if s_+5<16: kvread(s_+5)
            a(MF16(DK,f,f+4,'0' if s_==0 else None) if isv else MF16(DK,f+4,f,'0' if s_==0 else None))
        ringfill(8,10)
        a(f's_lshl_b32 {sr(sT)}, {sr(sRB)}, 12\ns_lshr_b32 {sr(sT2)}, {sr(sT3)}, 1\ns_lshl_b32 {sr(sT2)}, {sr(sT2)}, 11\ns_add_u32 {sr(sT)}, {sr(sT)}, {sr(sT2)}')
        a(f's_and_b32 {sr(sT2)}, {sr(sT3)}, 1\ns_lshl_b32 {sr(sT2)}, {sr(sT2)}, {9 if isv else 8}\ns_add_u32 {sr(sT)}, {sr(sT)}, {sr(sT2)}\nv_lshlrev_b32 v20, 4, v28')
        a(f'v_cvt_pk_bf16_f32 v16, {vr(DK)}, {vr(DK+1)}\nv_cvt_pk_bf16_f32 v17, {vr(DK+2)}, {vr(DK+3)}')
        if not isv:
            a(f'v_lshl_add_u32 v23, v21, 9, v20\nv_lshl_add_u32 v23, v22, 3, v23')
            a(f'buffer_store_dwordx2 v[16:17], v23, {sr(R_WS,4)}, {sr(sT)} offen sc1')
            a(f'v_mul_f32 v26, {vr(DK)}, {vr(DK)}\nv_fma_f32 v26, {vr(DK+1)}, {vr(DK+1)}, v26\nv_fma_f32 v26, {vr(DK+2)}, {vr(DK+2)}, v26\nv_fma_f32 v26, {vr(DK+3)}, {vr(DK+3)}, v26')
            a('v_mov_b32 v25, v26\ns_nop 1\nv_permlane32_swap_b32 v25, v26\ns_nop 1\nv_add_f32 v26, v25, v26')
            a(f's_branch {ld}\n{lv}:')
        else:
            a(f'v_lshl_add_u32 v23, v22, 8, v20\nv_lshl_add_u32 v23, v21, 3, v23')
            a(f'buffer_store_dwordx2 v[16:17], v23, {sr(R_WS,4)}, {sr(sT)} offen offset:1024 sc1')
            a(f'v_max3_f32 v27, abs({vr(DK)}), abs({vr(DK+1)}), abs({vr(DK+2)})\nv_max_f32 v27, abs({vr(DK+3)}), v27')
            a(f'v_mov_b32 v25, 0x7e000000\nv_cmp_lt_f32 vcc, {hx(2.0**20)}, v27\ns_nop 1\nv_cndmask_b32 v26, 0, v25, vcc')
            a('v_mov_b32 v25, v26\ns_nop 1\nv_permlane32_swap_b32 v25, v26\ns_nop 1\nv_max_u32 v26, v25, v26')
    a(f'{ld}:')
    a('v_mov_b32 v25, v26\ns_nop 1\nv_permlane16_swap_b32 v25, v26\ns_nop 1\nv_add_f32 v26, v25, v26')
    for dpp in ('row_shr:1','row_shr:2','row_shr:4','row_shr:8'):
        a(f's_nop 1\nv_max_u32_dpp v26, v26, v26 {dpp} row_mask:0xf bank_mask:0xf')
    stamp(a,13)
    a(f's_lshl_b32 {sr(sT)}, {sr(sRB)}, 3\ns_add_u32 {sr(sT)}, {sr(sT)}, {sr(sJ)}\ns_lshl_b32 {sr(sT)}, {sr(sT)}, 4\ns_add_u32 {sr(sT)}, {sr(sT)}, {WS_F1}\nv_mov_b32 v27, 0')
    a(f's_mov_b32 {sr(sKVO)}, {sr(sT)}\ns_setprio 0\ns_branch {lP}\n{lP2}:')
    ringfill(8,10)
    a(f'{lP}:')
    ACC=128
    FR=64
    def p1read(s):
        f=FR+16*(s%3); o=(s%5)*2048
        return [f'ds_read_b128 {vr(f,4)}, {vr(vXA)} offset:{s*32}',
                f'ds_read_b64_tr_b16 {vr(f+8,2)}, {vr(vW0)} offset:{o}',f'ds_read_b64_tr_b16 {vr(f+10,2)}, {vr(vW0)} offset:{o+512}',
                f'ds_read_b128 {vr(f+4,4)}, {vr(vXA)} offset:{s*32+32*XS}',
                f'ds_read_b64_tr_b16 {vr(f+12,2)}, {vr(vW1)} offset:{o}',f'ds_read_b64_tr_b16 {vr(f+14,2)}, {vr(vW1)} offset:{o+512}']
    for x in p1read(0)+p1read(1): a(x)
    a('s_waitcnt lgkmcnt(6)')
    for s in range(16):
        f=FR+16*(s%3)
        mf=[MF(ACC+16*(2*mt+t),f+8+4*t,f+4*mt,'0' if s==0 else None) for mt in range(2) for t in range(2)]
        rd=p1read(s+2) if s<14 else []
        if 'nox' in cfg.x: rd=[r if 'b128' not in r else 's_nop 0' for r in rd]
        if 'notr' in cfg.x: rd=[r if 'b128' in r else 's_nop 0' for r in rd]
        if 'nomf' in cfg.x: mf=['s_nop 0']*4
        if s<3 and s+2>=cfg.pre: a('s_waitcnt vmcnt(4)')
        if 3<=s<14: a(f's_waitcnt vmcnt({4 if s<12 else 2*(13-s)})')
        if s==3: a(f's_cmp_lg_u32 {sr(sPROD)}, 0\ns_cbranch_scc1 LPUB\nLPUBD:')
        a(mf[0])
        for x in rd[:3]: a(x)
        a(mf[1])
        for x in rd[3:]: a(x)
        a(mf[2])
        if s+5<16 and 'nodma' not in cfg.x:
            for c in range(2):
                x=dma(a,(sSLOT,(s%5)*2048+c*1024),vWD,R_WA,sr(sWOFF)); a('s_nop 0' if c==0 else mf[3]); a(x); a(f's_add_u32 {sr(sWOFF)}, {sr(sWOFF)}, {sr(sWSTEP)}')
        else: a(mf[3])
        if s==11: srd(a,R_T0,P_W2,1792*1024); srd(a,R_WA,P_WO,512*1024)
        if s==13:
            l=L('nw7')
            a(f's_cmp_lg_u32 {sr(sPROD)}, 0\ns_cbranch_scc0 {l}')
            a(f's_lshl_b32 {sr(sWSTEP)}, {sr(sC3)}, 1')
            for s_ in range(8):
                for y in w3dma(s_): a(y)
            a(f's_and_b32 {sr(sT)}, {sr(sRB)}, 7\ns_mul_i32 {sr(sT2)}, {sr(sJ)}, 224\ns_add_u32 {sr(sT2)}, {sr(sT2)}, {sr(sT)}\ns_lshl_b32 {sr(sT2)}, {sr(sT2)}, 10\ns_mov_b32 exec_hi, 0xffffff')
            for g in range(4): a(f'buffer_load_dword {vr(vPF)}, {vr(vT2)}, {sr(R_T0,4)}, {sr(sT2)} offen offset:{256*g}')
            a(f's_lshl_b32 {sr(sT)}, {sr(sT)}, 10\ns_lshl_b32 {sr(sT2)}, {sr(sJ)}, 7\ns_add_u32 {sr(sT)}, {sr(sT)}, {sr(sT2)}\ns_mov_b64 exec, -1')
            a(f'buffer_load_dword {vr(vPF)}, {vr(vTO)}, {sr(R_WA,4)}, {sr(sT)} offen\n{l}:')
        if s<15: a(f's_waitcnt lgkmcnt({6 if s<14 else 0})')
    l=L('nbias')
    a(f's_sub_u32 {sr(sT)}, {sr(sW)}, 1\ns_cmp_lt_u32 {sr(sT)}, 3\ns_cbranch_scc0 {l}')
    for mt in (1,0):
        for t in range(2): a(MF(ACC+16*(2*mt+t),(vBA0,vBA1)[t],vBB))
    a(f'{l}:')
    stamp(a,4)
    vLA=40
    a(f'v_lshlrev_b32 {vr(vLA)}, 4, {vr(vL)}\nv_add_u32 v41, {sr(sSLOT)}, {vr(vLA)}\nv_add_u32 v42, {sr(sPSLOT)}, {vr(vLA)}')
    a.nop(4)
    a.nop(2)
    a(f's_mov_b32 {sr(sFL)}, {WS_F1}\nv_mov_b32 v249, 0\nv_mov_b32 {vr(VK)}, {vr(vLA)}')
    lg=L('gx'); lx=L('xdone')
    a(f's_cmp_eq_u32 {sr(sKH)}, 0\ns_cbranch_scc0 {lg}')
    for i in range(8): a(f'ds_write_b128 v41, {vr(ACC+32+4*i,4)} offset:{1024*i}')
    a(f's_branch {lx}\n{lg}:')
    for i in range(8): a(f'ds_write_b128 v41, {vr(ACC+4*i,4)} offset:{1024*i}')
    for i in range(16): a(f'v_mov_b64 {vr(ACC+2*i,2)}, {vr(ACC+32+2*i,2)}')
    a(f'{lx}:')
    CST=44
    a(f'v_mov_b32 {vr(CST)}, {hx(GC1)}\nv_mov_b32 {vr(CST+1)}, {hx(GC1)}\nv_mov_b32 {vr(CST+2)}, {hx(GC2)}\nv_mov_b32 {vr(CST+3)}, {hx(GC2)}\nv_mov_b32 {vr(CST+4)}, 1.0\nv_mov_b32 {vr(CST+5)}, 1.0')
    a('s_waitcnt vmcnt(5) lgkmcnt(0)\ns_barrier')
    PT=64
    for i in range(8): a(f'ds_read_b128 {vr(PT+4*i,4)}, v42 offset:{1024*i}')
    def look():
        l=L('nlook')
        a(f's_cmp_eq_u32 {sr(sKH)}, 0\ns_cbranch_scc0 {l}')
        lookloads(a)
        a(f'{l}:')
    for i in range(8):
        a(f's_waitcnt lgkmcnt({7-i})')
        a(f'v_pk_add_f32 {vr(ACC+4*i,2)}, {vr(ACC+4*i,2)}, {vr(PT+4*i,2)}\nv_pk_add_f32 {vr(ACC+4*i+2,2)}, {vr(ACC+4*i+2,2)}, {vr(PT+4*i+2,2)}')
    lq=L('qepi'); le=L('epidone')
    a(f's_cmp_eq_u32 {sr(sU)}, 0\ns_cbranch_scc1 {lq}')
    gelu(a,ACC,cfg.lookat,PT,CST,True)
    look()
    gelu(a,ACC+cfg.lookat,32-cfg.lookat,PT,CST,True)
    a(f's_branch {le}\n{lq}:')
    QS=0.25*math.log2(math.e)
    a(f'v_mov_b32 v50, {hx(QS)}\nv_mov_b32 v51, {hx(QS)}')
    for i in range(16): a(f'v_pk_mul_f32 {vr(ACC+2*i,2)}, {vr(ACC+2*i,2)}, v[50:51]')
    for hq in range(4):
        a(f'v_pk_mul_f32 {vr(PT+2*hq,2)}, {vr(ACC+8*hq,2)}, {vr(ACC+8*hq,2)}')
    for i in range(1,4):
        for hq in range(4): a(f'v_pk_fma_f32 {vr(PT+2*hq,2)}, {vr(ACC+8*hq+2*i,2)}, {vr(ACC+8*hq+2*i,2)}, {vr(PT+2*hq,2)}')
    for hq in range(4): a(f'v_add_f32 {vr(PT+2*hq)}, {vr(PT+2*hq)}, {vr(PT+2*hq+1)}')
    for hq in range(4): a(f'v_mov_b32 {vr(PT+2*hq+1)}, {vr(PT+2*hq)}')
    a.nop(1)
    for hq in range(4): a(f'v_permlane32_swap_b32 {vr(PT+2*hq)}, {vr(PT+2*hq+1)}')
    a.nop(1)
    for hq in range(4): a(f'v_add_f32 {vr(PT+2*hq)}, {vr(PT+2*hq)}, {vr(PT+2*hq+1)}')
    a(f'v_max3_f32 {vr(PT)}, {vr(PT)}, {vr(PT+2)}, {vr(PT+4)}\nv_max_f32 {vr(PT)}, {vr(PT)}, {vr(PT+6)}\nv_mov_b32 v52, {C_QMAX}\nds_max_u32 v52, {vr(PT)}')
    look()
    a(f'{le}:')
    pack(a,PT+16,ACC,32)
    for i in range(4): a(f'ds_write_b128 v42, {vr(PT+16+4*i,4)} offset:{1024*i}')
    stamp(a,5)
    a(f's_cmp_eq_u32 {sr(sKH)}, 0\ns_cbranch_scc0 LG')
    attention(a)
    a('LPUB:')
    l=L('havetag')
    a(f'v_cmp_eq_u32 vcc, 0, v36\ns_cbranch_vccz {l}')
    gettag(a,36)
    a(f'{l}:\nv_mov_b32 v24, v36\nv_mov_b32 v25, v37\ns_mov_b64 exec, 0x8000\nbuffer_store_dwordx4 v[24:27], v27, {sr(R_WS,4)}, {sr(sKVO)} offen sc1\ns_mov_b64 exec, -1')
    stamp(a,3)
    a('s_branch LPUBD')
    a('LG:')
    gwaves(a)
    a('LEND:')
    return a

def kvload(kb):
    b=KV+12*kb
    return [f'buffer_load_dwordx4 {vr(b,4)}, {vr(VK)}, {sr(R_WS,4)}, {sr(sKVO)} offen sc1',
            f's_mov_b64 exec, {sr(sEX,2)}',
            f'buffer_load_dwordx4 {vr(b+4,4)}, {vr(VV)}, {sr(R_WS,4)}, {sr(sKVO)} offen offset:1024 sc1',
            f'buffer_load_dwordx4 {vr(b+8,4)}, {vr(VV)}, {sr(R_WS,4)}, {sr(sKVO)} offen offset:1536 sc1',
            's_mov_b64 exec, -1', f's_add_u32 {sr(sKVO)}, {sr(sKVO)}, 0x800']
def lookloads(a):
    a(f'buffer_load_dwordx2 v[250:251], v249, {sr(R_DBG,4)}, 0 offen sc1')
    for i in range(4): a(f'buffer_load_dwordx4 {vr(SB+4*i,4)}, {vr(VK)}, {sr(R_WS,4)}, {sr(sFL)} offen offset:{1024*i} sc1')
def lookcheck(a):
    a(f'v_cmp_eq_u32 {sr(sT,2) if False else "s[68:69]"}, 0, v250')
    for i in range(4):
        a(f'v_cmp_ne_u64 vcc, {vr(SB+4*i,2)}, v[250:251]\ns_or_b64 s[68:69], s[68:69], vcc')
    a('s_mov_b64 vcc, s[68:69]')
def attention(a):
    a('s_setprio 1')
    a(f'v_mov_b32 {vr(IDX)}, 0xdddddddd')
    a(f'v_and_b32 {vr(VV)}, 15, {vr(vL)}\nv_lshrrev_b32 v243, 5, {vr(vL)}\nv_lshl_add_u32 {vr(VV)}, v243, 4, {vr(VV)}\nv_lshlrev_b32 {vr(VV)}, 4, {vr(VV)}')
    a(f's_mov_b32 {sr(sEX)}, 0xffff\ns_mov_b32 {sr(sEX+1)}, 0xffff\ns_lshl_b32 {sr(sKVO)}, {sr(sW)}, 15')
    a(f'v_and_b32 v243, 27, {vr(vL)}\nv_cmp_eq_u32 vcc, 16, v243\nv_mov_b32 v244, 0x3f803f80\ns_nop 0\nv_cndmask_b32 v243, 0, v244, vcc')
    for kb in range(4):
        for r in range(4,12,2): a(f'v_mov_b32 {vr(KV+12*kb+r)}, v243\nv_mov_b32 {vr(KV+12*kb+r+1)}, v243')
    def firstloads():
        a(f's_lshr_b32 {sr(sT)}, s2, 3\ns_lshl_b32 {sr(sT)}, {sr(sT)}, 2\ns_add_u32 {sr(sT)}, {sr(sT)}, {sr(sW)}\ns_lshl_b32 {sr(sT)}, {sr(sT)}, 10\nv_lshlrev_b32 v244, 7, {vr(vL)}')
        for kb in range(3):
            for x in kvload(kb): a(x)
            if kb==0: a(f's_mov_b64 exec, 0xff\nbuffer_load_dword {vr(vPF)}, v244, {sr(R_WS,4)}, {sr(sT)} offen sc1\ns_mov_b64 exec, -1')
    l1=L('late')
    a(f's_mov_b32 {sr(sCNT)}, 0\ns_waitcnt vmcnt(0)')
    lookcheck(a)
    a(f's_cbranch_vccnz {l1}')
    firstloads()
    a(f's_mov_b32 {sr(sCNT)}, -1\n{l1}:')
    for p in range(4):
        a(f's_add_u32 {sr(sT)}, {sr(sW)}, {p}\ns_and_b32 {sr(sT)}, {sr(sT)}, 3\ns_lshl_b32 {sr(sT)}, {sr(sT)}, 10\ns_add_u32 {sr(sT)}, {sr(sT)}, {slot(0)}\nv_add_u32 {vr(245+p)}, {sr(sT)}, {vr(VK)}')
    a(f'v_mov_b32 v253, {MISC}')
    a('s_waitcnt lgkmcnt(0)')
    for i in range(8):
        for r in range(0,10,2): a(f'v_mov_b64 {vr(O+16*i+r,2)}, 0')
    for r in range(0,16,2): a(f'v_mov_b64 {vr(SB+16+r,2)}, 0')
    a('s_barrier')
    for i in range(8): a(f'ds_read_b128 {vr(Q+4*i,4)}, {vr(245+i//2)} offset:{0 if i%2 else 4*SLOTSZ}')
    a(f'ds_read_b32 v252, v253 offset:{C_QMAX-MISC}')
    l2=L('have'); l3=L('again')
    a(f's_cmp_eq_u32 {sr(sCNT)}, -1\ns_cbranch_scc1 {l2}\n{l3}:')
    lookloads(a)
    a(f's_add_u32 {sr(sCNT)}, {sr(sCNT)}, 1\ns_waitcnt vmcnt(0)')
    lookcheck(a)
    l4=L('go')
    a(f's_cmp_gt_u32 {sr(sCNT)}, {cfg.spin}\ns_cbranch_scc1 {l4}\ns_cbranch_vccz {l4}\ns_sleep 4\ns_branch {l3}\n{l4}:')
    firstloads()
    a(f'{l2}:')
    stamp(a,6)
    a(f'v_max3_u32 v250, {vr(SB+2)}, {vr(SB+6)}, {vr(SB+10)}\nv_max_u32 v250, v250, {vr(SB+14)}')
    for dpp in ('row_shr:1','row_shr:2','row_shr:4','row_shr:8','row_bcast:15','row_bcast:31'):
        a(f's_nop 1\nv_max_u32_dpp v250, v250, v250 {dpp} row_mask:0xf bank_mask:0xf')
    a(f's_nop 1\nv_readlane_b32 {sr(sT)}, v250, 63\ns_nop 0')
    a(f's_waitcnt lgkmcnt(0)\nv_mul_f32 v252, {sr(sT)}, v252\nv_cmp_nge_f32 vcc, {hx(88.0**2)}, v252')
    if cfg.force_slow: a('s_branch LSLOW')
    a('s_cbranch_vccnz LSLOW')
    a('s_waitcnt vmcnt(7)')
    a(MF(SB,KV,Q,'0'))
    a(f's_mov_b32 {sr(sCNT)}, 4')
    a.nop(10)
    if cfg.stamps and cfg.cyc: a(f's_mov_b32 {sr(sST+3)}, {sr(sST)}\ns_mov_b32 {sr(sST+2)}, {sr(sST)}')
    a('.p2align 6\nLATT:')
    for kt in range(4):
        kvc=KV+12*kt; kvn=KV+12*((kt+1)%4); kvp=KV+12*((kt+3)%4)
        for q in range(8):
            i=kt*8+q
            cur=SB+16*(i%2); oth=SB+16*((i+1)%2)
            pq=(q-1)%8; pkv=kvc if q>0 else kvp
            nq=(q+1)%8; nkv=kvc if q<7 else kvn
            e=[f'v_exp_f32 {vr(cur+r)}, {vr(cur+r)}' for r in range(16)]
            ld=[]
            if q==1: ld=kvload((kt+3)%4)
            if q==6:
                ld=['s_waitcnt vmcnt(6)']
                if kt==3: ld+=[f's_sub_u32 {sr(sCNT)}, {sr(sCNT)}, 1', f'ds_read_b32 v252, v253 offset:{C_GD-MISC}']
            if q==6 and cfg.stamps and cfg.cyc:
                ld=['s_memtime s[96:97]','s_waitcnt lgkmcnt(0)']+ld+['s_memtime s[98:99]','s_waitcnt lgkmcnt(0)','s_sub_u32 s98, s98, s96',f's_add_u32 {sr(sST+3)}, {sr(sST+3)}, s98']
            if q==1 and cfg.stamps and cfg.cyc:
                ld=['s_memtime s[96:97]\ns_waitcnt lgkmcnt(0)\n'+ld[0]]+ld[1:5]+[ld[5]+f'\ns_memtime s[98:99]\ns_waitcnt lgkmcnt(0)\ns_sub_u32 s98, s98, s96\ns_add_u32 {sr(sST+2)}, {sr(sST+2)}, s98']
            seq=[SM(O+16*pq,pkv+4,oth,IDX)]+e[0:4]+[SM(O+16*pq,pkv+8,oth+8,IDX)]+e[4:10]+[MF(oth,nkv,Q+4*nq,'0')]
            if q==1: seq+=[ld[0],e[10]]+ld[1:5]+[e[11],ld[5]]+e[12:]
            else: seq+=ld+e[10:]
            for x in seq: a(x)
    if cfg.stamps:
        a(f's_mov_b32 {sr(sST+9)}, {sr(sST+10)}\ns_mov_b32 {sr(sST+10)}, {sr(sST+11)}\ns_mov_b32 {sr(sST+11)}, {sr(sST+12)}'); stamp(a,12)
    a(f's_cmp_lg_u32 {sr(sCNT)}, 0\ns_cbranch_scc1 LATT')
    a('s_waitcnt lgkmcnt(0)')
    a(SM(O+16*7,KV+36+4,SB+16,IDX)); a(SM(O+16*7,KV+36+8,SB+24,IDX))
    a('LCOMB:')
    stamp(a,7)
    CB=slot(0)
    TS=2304
    lw=L('gd')
    a(f'v_cmp_gt_u32 vcc, 4, v252\nv_lshlrev_b32 v243, 2, {vr(vL)}\ns_cbranch_vccz {lw}')
    ldspoll(a,252,253,C_GD-MISC,4)
    a(f'{lw}:')
    for p in range(1,4):
        a(f's_add_u32 {sr(sT)}, {sr(sW)}, {p}\ns_and_b32 {sr(sT)}, {sr(sT)}, 3\ns_mul_i32 {sr(sT)}, {sr(sT)}, {6*TS}\ns_add_u32 {sr(sT)}, {sr(sT)}, {CB+(p-1)*2*TS}')
        a(f'v_add_u32 v244, {sr(sT)}, {vr(VK)}\nv_add_u32 v245, {sr(sT)}, v243')
        for mt in range(2):
            o=O+16*(2*p+mt)
            a(f'ds_write_b128 v244, {vr(o,4)} offset:{mt*TS}\nds_write_b128 v244, {vr(o+4,4)} offset:{mt*TS+1024}\nds_write_b32 v245, {vr(o+8)} offset:{mt*TS+2048}')
    a(f's_mul_i32 {sr(sT)}, {sr(sW)}, {6*TS}\ns_add_u32 {sr(sT)}, {sr(sT)}, {CB}\nv_add_u32 v244, {sr(sT)}, {vr(VK)}\nv_add_u32 v245, {sr(sT)}, v243')
    a(f's_lshl_b32 {sr(sT)}, {sr(sRB)}, 5\ns_lshl_b32 {sr(sT2)}, {sr(sJ)}, 2\ns_add_u32 {sr(sT)}, {sr(sT)}, {sr(sT2)}\ns_add_u32 {sr(sT)}, {sr(sT)}, {sr(sW)}\ns_lshl_b32 {sr(sT)}, {sr(sT)}, 11\ns_add_u32 {sr(sT)}, {sr(sT)}, {WS_O}')
    stamp(a,13)
    a('s_waitcnt lgkmcnt(0)\ns_barrier')
    stamp(a,14)
    T=[128,138,148,208,218,228]
    for mt in range(2):
        for k in range(3):
            b=T[3*mt+k]; o=(2*k+mt)*TS
            a(f'ds_read_b128 {vr(b,4)}, v244 offset:{o}\nds_read_b128 {vr(b+4,4)}, v244 offset:{o+1024}\nds_read_b32 {vr(b+8)}, v245 offset:{o+2048}')
    for mt in range(2):
        R=O+16*mt
        for k in range(3):
            b=T[3*mt+k]
            a(f's_waitcnt lgkmcnt({3*(5-3*mt-k)})')
            for r in range(0,8,2): a(f'v_pk_add_f32 {vr(R+r,2)}, {vr(R+r,2)}, {vr(b+r,2)}')
            a(f'v_add_f32 {vr(R+8)}, {vr(R+8)}, {vr(b+8)}')
        a(f'v_rcp_f32 {vr(R+8)}, {vr(R+8)}\ns_nop 0')
        for r in range(0,8,2): a(f'v_pk_mul_f32 {vr(R+r,2)}, {vr(R+r,2)}, {vr(R+8,2)} op_sel_hi:[1,0]')
        pack(a,R+12,R,8)
        for r in range(4): a(f'v_min_u32 {vr(R+12+r)}, -2, {vr(R+12+r)}')
        a(f'buffer_store_dwordx4 {vr(R+12,4)}, {vr(VK)}, {sr(R_WS,4)}, {sr(sT)} offen offset:{1024*mt} sc1')
    a('s_barrier')
    stamp(a,8)
    dump_stamps(a)
    a('s_endpgm')
    slowpath(a)
def slowpath(a):
    MX=232
    a('LSLOW:')
    a(f'v_mov_b32 v247, 1\nv_mov_b32 v246, {C_S1}\ns_waitcnt vmcnt(0)\ns_mov_b64 exec, 1\nds_add_u32 v246, v247\ns_mov_b64 exec, -1')
    for i in range(8): a(f'v_mov_b32 {vr(MX+i)}, 0xff800000')
    a(f's_lshl_b32 {sr(sKVO)}, {sr(sW)}, 15\ns_mov_b32 {sr(sT3)}, 16\nLS1:')
    a(f'buffer_load_dwordx4 {vr(KV,4)}, {vr(VK)}, {sr(R_WS,4)}, {sr(sKVO)} offen sc1\ns_add_u32 {sr(sKVO)}, {sr(sKVO)}, 0x800\ns_waitcnt vmcnt(0)')
    for q in range(8):
        a(MF(SB,KV,Q+4*q,'0')); a.nop(14)
        for r in range(0,16,2): a(f'v_max3_f32 {vr(MX+q)}, {vr(SB+r)}, {vr(SB+r+1)}, {vr(MX+q)}')
    a(f's_sub_u32 {sr(sT3)}, {sr(sT3)}, 1\ns_cmp_lg_u32 {sr(sT3)}, 0\ns_cbranch_scc1 LS1')
    ldspoll(a,245,246,0,4)
    a(f'v_lshlrev_b32 v243, 2, {vr(vL)}\ns_lshl_b32 {sr(sT)}, {sr(sW)}, 11\ns_and_b32 {sr(sT2)}, {sr(sT)}, 0x800\ns_lshr_b32 {sr(sT)}, {sr(sW)}, 1\ns_mul_i32 {sr(sT)}, {sr(sT)}, {4*SLOTSZ}')
    a(f's_add_u32 {sr(sT)}, {sr(sT)}, {sr(sT2)}\ns_add_u32 {sr(sT3)}, {sr(sT)}, {slot(0)}')
    for p in range(4):
        a(f's_add_u32 {sr(sT)}, {sr(sW)}, {p}\ns_and_b32 {sr(sT)}, {sr(sT)}, 3\ns_lshl_b32 {sr(sT)}, {sr(sT)}, 9\ns_add_u32 {sr(sT2)}, {sr(sT)}, {sr(sT3)}\nv_add_u32 v244, {sr(sT2)}, v243')
        for mt in range(2): a(f'ds_write_b32 v244, {vr(MX+2*p+mt)} offset:{256*mt}')
    a(f's_waitcnt lgkmcnt(0)\ns_mov_b64 exec, 1\nds_add_u32 v246, v247\ns_mov_b64 exec, -1')
    ldspoll(a,245,246,0,8)
    a(f'v_and_b32 v243, 31, {vr(vL)}\nv_lshlrev_b32 v243, 2, v243')
    for p in range(4):
        a(f's_add_u32 {sr(sT)}, {sr(sW)}, {p}\ns_and_b32 {sr(sT)}, {sr(sT)}, 3\ns_lshl_b32 {sr(sT)}, {sr(sT)}, 9\ns_add_u32 {sr(sT)}, {sr(sT)}, {slot(0)}\nv_add_u32 v244, {sr(sT)}, v243')
        for mt in range(2):
            for w in range(4):
                for h in range(2): a(f'ds_read_b32 {vr(SB+2*w+h)}, v244 offset:{(w//2)*4*SLOTSZ+(w%2)*2048+256*mt+128*h}')
            a('s_waitcnt lgkmcnt(0)')
            for r in range(0,8,2): a(f'v_max3_f32 {vr(MX+2*p+mt)}, {vr(MX+2*p+mt)}, {vr(SB+r)}, {vr(SB+r+1)}')
    a(f's_lshl_b32 {sr(sKVO)}, {sr(sW)}, 15\ns_mov_b32 {sr(sT3)}, 16\nLS2:')
    for x in kvload(0): a(x)
    a('s_waitcnt vmcnt(0)')
    for q in range(8):
        a(MF(SB,KV,Q+4*q,'0')); a.nop(14)
        for r in range(16): a(f'v_sub_f32 {vr(SB+r)}, {vr(SB+r)}, {vr(MX+q)}')
        for r in range(16): a(f'v_exp_f32 {vr(SB+r)}, {vr(SB+r)}')
        a.nop(2)
        a(SM(O+16*q,KV+4,SB,IDX)); a(SM(O+16*q,KV+8,SB+8,IDX))
    a.nop(14)
    a(f's_sub_u32 {sr(sT3)}, {sr(sT3)}, 1\ns_cmp_lg_u32 {sr(sT3)}, 0\ns_cbranch_scc1 LS2')
    a(f's_mov_b64 exec, 1\nds_add_u32 v246, v247\ns_mov_b64 exec, -1')
    ldspoll(a,245,246,0,12)
    a('v_mov_b32 v252, 0\ns_branch LCOMB')

def gwaves(a):
    ACC=0; FR=128
    vXA=vXA3; vLA=vLAG
    CST=186
    sW2=sWOFF; sR=sSLOT
    def ringoff(i):
        return (4*SLOTSZ+4096+i*1024) if i<6 else (4096+(i-6)*1024)
    def w2dma(ks):
        out=[]
        for c in range(4):
            i=(ks%3)*4+c
            out.append([f's_add_u32 m0, {sr(sPSLOT)}, {ringoff(i)}', f's_add_u32 {sr(sT)}, {sr(sW2)}, {(c%2)*8192+(c//2)*128}', f'buffer_load_dwordx4 {vr(vD)}, {sr(R_T0,4)}, {sr(sT)} offen lds'])
        adv=[f's_add_u32 {sr(sW2)}, {sr(sW2)}, 16384'] if ks!=11 else [f's_lshl_b32 {sr(sW2)}, {sr(sC3)}, 10', f's_lshl_b32 {sr(sT)}, {sr(sU)}, 8', f's_add_u32 {sr(sW2)}, {sr(sW2)}, {sr(sT)}']
        return out,adv
    def wodma(c): return [f's_add_u32 m0, {sr(sT3)}, {c*1024}','s_nop 0',f'buffer_load_dwordx4 {vr(vD)}, {sr(R_WA,4)}, {sr(sW2)} offen lds',f's_add_u32 {sr(sW2)}, {sr(sW2)}, 8192']
    def w2fill(k0=0,k1=2):
        for ks in range(k0,k1):
            d,adv=w2dma(ks)
            for x in d:
                for y in x: a(y)
            for y in adv: a(y)
    a(f's_lshl_b32 {sr(sW2)}, {sr(sC0)}, 10\ns_lshl_b32 {sr(sT)}, {sr(sU)}, 8\ns_add_u32 {sr(sW2)}, {sr(sW2)}, {sr(sT)}')
    def quarter(src,off):
        a('s_setprio 2')
        gelu(a,src,8,216,CST,False)
        pack(a,216,src,8)
        a(f's_lshl_b32 {sr(sT)}, {sr(sU)}, 10\nv_add_u32 v204, {sr(sT)}, {vr(vH3)}\nds_write_b128 v204, v[216:219]')
        a(f's_waitcnt lgkmcnt(0)\ns_mov_b64 exec, 1\nds_add_u32 v202, v203 offset:{C_H3-MISC}\ns_mov_b64 exec, -1\ns_setprio 0')
    a(f'v_mov_b64 v[176:177], -1\nv_mov_b64 v[178:179], -1\nv_mov_b32 v202, {MISC}\nv_mov_b32 v203, 1\nv_mov_b32 {vr(CST)}, {hx(GC1)}\nv_mov_b32 {vr(CST+2)}, {hx(GC2)}')
    lN=L('gN'); lF=L('ffn2')
    a(f's_cmp_eq_u32 {sr(sU)}, 0\ns_cbranch_scc0 {lN}')
    for r in (193,194,195,45,46,47): a(f'v_mov_b32 {vr(r)}, 0')
    a('v_mov_b32 v44, 0x3f80')
    def r3(s):
        f=FR+12*(s%2); o=(s%8)*1024
        return [f'ds_read_b128 {vr(f,4)}, {vr(vXA)} offset:{s*32}',f'ds_read_b64_tr_b16 {vr(f+8,2)}, {vr(vW3)} offset:{o}',f'ds_read_b64_tr_b16 {vr(f+10,2)}, {vr(vW3)} offset:{o+256}',f'ds_read_b128 {vr(f+4,4)}, {vr(vXA)} offset:{s*32+32*XS}']
    a(f's_lshl_b32 {sr(sWSTEP)}, {sr(sC3)}, 1\ns_add_u32 {sr(sWSTEP)}, {sr(sWSTEP)}, {8*16*3584}')
    for x in r3(0): a(x)
    a(MF(0,192,44,'0')); a(MF(16,192,44,'0'))
    a('s_waitcnt lgkmcnt(0)')
    wpos=max(24,cfg.b3pos)
    for s in range(32):
        f=FR+12*(s%2)
        if 7<=s<31: a(f's_waitcnt vmcnt({(min(s+7,31)-(s+1))+(8 if s>wpos else 0)})')
        a(MF(0,f+8,f))
        if s<31:
            for x in r3(s+1): a(x)
        a(MF(16,f+8,f+4))
        if s+8<32:
            for y in w3dma(s+8): a(y)
        if s==cfg.b3pos: a('s_barrier')
        if s==wpos: w2fill()
        if s<31: a('s_waitcnt lgkmcnt(0)')
    a(f's_setprio 2\nv_add_u32 v204, {R3OFF}, {vr(vLA)}')
    a.nop(9)
    for i in range(2,8): a(f'ds_write_b128 v204, {vr(4*i,4)} offset:{1024*i}')
    a(f's_waitcnt lgkmcnt(0)\nds_write_b32 v202, v203 offset:{C_R3-MISC}')
    quarter(0,0)
    a(f's_branch {lF}\n{lN}:')
    a('s_waitcnt lgkmcnt(0)\ns_barrier')
    w2fill()
    a(f'{lF}:')
    stamp(a,6)
    a(f's_lshl_b32 {sr(sT)}, {sr(sRB)}, 5\ns_lshl_b32 {sr(sT2)}, {sr(sJ)}, 2\ns_add_u32 {sr(sT)}, {sr(sT)}, {sr(sT2)}\ns_add_u32 {sr(sT)}, {sr(sT)}, {sr(sU)}\ns_lshl_b32 {sr(sT)}, {sr(sT)}, 11\ns_add_u32 {sr(sT)}, {sr(sT)}, {WS_O}')
    a(f'buffer_store_dwordx4 v[176:179], {vr(vLA)}, {sr(R_WS,4)}, {sr(sT)} offen sc1\nbuffer_store_dwordx4 v[176:179], {vr(vLA)}, {sr(R_WS,4)}, {sr(sT)} offen offset:1024 sc1')
    def r2(ks):
        f=FR+24*(ks%2); out=[]
        if ks<12:
            ft=ks//2; u=1+ft//2; o=u*SLOTSZ+((ft%2)*2+ks%2)*1024
            out+=[f'ds_read_b128 {vr(f,4)}, {vr(vH0)} offset:{o}', f'ds_read_b128 {vr(f+4,4)}, {vr(vH1)} offset:{o}']
        else:
            out+=[f'ds_read_b128 {vr(f,4)}, {vr(vH3)} offset:{(ks%2)*1024}', f'ds_read_b128 {vr(f+4,4)}, {vr(vH3)} offset:{2048+(ks%2)*1024}']
        for t in range(4):
            o=ringoff((ks%3)*4+(t//2)*2); va=(vA0,vA1)[t%2]
            out+=[f'ds_read_b64_tr_b16 {vr(f+8+4*t,2)}, {vr(va)} offset:{o}', f'ds_read_b64_tr_b16 {vr(f+10+4*t,2)}, {vr(va)} offset:{o+1024}']
        return out
    a('s_waitcnt vmcnt(6)')
    for x in r2(0): a(x)
    w2fill(2,3)
    a('s_waitcnt lgkmcnt(0)')
    for ks in range(14):
        f=FR+24*(ks%2)
        mf=[MF(ACC+16*(2*t+mt),f+8+4*t,f+4*mt,'0' if ks==0 else None) for t in range(4) for mt in range(2)]
        if ks==11:
            l=L('nq')
            a(f's_setprio 2\ns_cmp_eq_u32 {sr(sU)}, 0\ns_cbranch_scc1 {l}')
            ldspoll(a,205,202,C_R3-MISC,1)
            a(f's_lshl_b32 {sr(sT)}, {sr(sU)}, 11\ns_add_u32 {sr(sT)}, {sr(sT)}, {R3OFF}\nv_add_u32 v204, {sr(sT)}, {vr(vLA)}')
            a('ds_read_b128 v[208:211], v204\nds_read_b128 v[212:215], v204 offset:1024\ns_waitcnt lgkmcnt(0)')
            quarter(208,0)
            a(f'{l}:')
            a('s_setprio 2'); ldspoll(a,205,202,C_H3-MISC,4); a('s_setprio 0')
        if ks<13: a(f's_waitcnt vmcnt({6 if ks==0 else 4})')
        rd=r2(ks+1) if ks<13 else []
        if ks+3<14: d,adv=w2dma(ks+3)
        else:
            if ks==11: a(f's_lshl_b32 {sr(sW2)}, {sr(sU)}, 17\ns_lshl_b32 {sr(sT)}, {sr(sJ)}, 7\ns_add_u32 {sr(sW2)}, {sr(sW2)}, {sr(sT)}\ns_lshl_b32 {sr(sT3)}, {sr(sU)}, 14')
            d=[wodma(4*(ks-11)+c) for c in range(4)]; adv=[]
        for i in range(8):
            a(mf[i])
            for x in rd[2*i:2*i+2]: a(x)
            if i>=4 and d:
                for y in d[i-4]: a(y)
        for y in adv: a(y)
        if ks<13: a('s_waitcnt lgkmcnt(0)')
    stamp(a,7)
    a(f's_mov_b64 exec, 1\nds_add_u32 v202, v203 offset:{C_GD-MISC}\ns_mov_b64 exec, -1\ns_setprio 2')
    a(f's_waitcnt vmcnt(4)')
    for c in range(12,16):
        for y in wodma(c): a(y)
    a(f's_lshl_b32 {sr(sT)}, {sr(sRB)}, 3\ns_lshl_b32 {sr(sT2)}, {sr(sU)}, 1\ns_add_u32 {sr(sT)}, {sr(sT)}, {sr(sT2)}\ns_lshl_b32 {sr(sT)}, {sr(sT)}, 3\ns_add_u32 {sr(sT)}, {sr(sT)}, {sr(sJ)}\ns_lshl_b32 {sr(sT)}, {sr(sT)}, 13\ns_add_u32 {sr(sT)}, {sr(sT)}, {WS_P}')
    for t4 in range(4):
        for mt in range(2):
            i=2*t4+mt; p=FR+8*(i%4)
            pack(a,p,ACC+16*i,16)
            if mt==0: a(f's_add_u32 {sr(sT2)}, {sr(sT)}, {(t4//2)*65536+(t4%2)*4096}')
            a(f's_waitcnt vmcnt({cfg.stpace})')
            a(f'buffer_store_dwordx4 {vr(p,4)}, {vr(vLA)}, {sr(R_WS,4)}, {sr(sT2)} offen offset:{mt*2048} sc1\nbuffer_store_dwordx4 {vr(p+4,4)}, {vr(vLA)}, {sr(R_WS,4)}, {sr(sT2)} offen offset:{mt*2048+1024} sc1')
    gettag(a,2)
    a(f's_mov_b64 exec, 1\nds_add_u32 v202, v203 offset:{C_WO-MISC}\ns_mov_b64 exec, -1')
    a(f's_lshl_b32 {sr(sT)}, {sr(sRB)}, 3\ns_add_u32 {sr(sT)}, {sr(sT)}, {sr(sJ)}\ns_lshl_b32 {sr(sT)}, {sr(sT)}, 7\ns_lshl_b32 {sr(sT2)}, {sr(sU)}, 3\ns_add_u32 {sr(sT)}, {sr(sT)}, {sr(sT2)}\ns_add_u32 {sr(sT)}, {sr(sT)}, {WS_F2}')
    a(f's_mov_b64 exec, 1\nbuffer_store_dwordx2 v[2:3], v4, {sr(R_WS,4)}, {sr(sT)} offen sc1\ns_mov_b64 exec, -1')
    stamp(a,8)
    sMT=sWSTEP; sK2=sKVO
    a(f's_and_b32 {sr(sMT)}, {sr(sU)}, 1\ns_lshr_b32 {sr(sK2)}, {sr(sU)}, 1')
    FA=0
    E0=32; E1=36; BA=40; BB=48; XR=52
    LD=112
    srd(a,R_B,P_B2,1024)
    a(f's_lshl_b32 {sr(sT)}, {sr(sK2)}, 20\ns_lshl_b32 {sr(sT2)}, {sr(sJ)}, 7\ns_add_u32 {sr(sT)}, {sr(sT)}, {sr(sT2)}')
    a(f'v_lshrrev_b32 v68, 5, {vr(vL)}\nv_lshlrev_b32 v69, 20, v68\nv_lshl_add_u32 v69, {vr(vL)}, 1, v69')
    a(f'buffer_load_ushort {vr(BA)}, v69, {sr(R_B,4)}, {sr(sT)} offen\nbuffer_load_ushort {vr(BA+4)}, v69, {sr(R_B,4)}, {sr(sT)} offen offset:64')
    a(f'v_and_b32 v70, 31, {vr(vL)}\nv_lshlrev_b32 v71, 10, v70\nv_lshl_add_u32 v71, v68, 3, v71')
    a(f's_lshl_b32 {sr(sT)}, {sr(sRB)}, 16\ns_lshl_b32 {sr(sT3)}, {sr(sMT)}, 15\ns_add_u32 {sr(sT)}, {sr(sT)}, {sr(sT3)}\ns_add_u32 {sr(sT)}, {sr(sT)}, {sr(sT2)}')
    a(f's_mov_b32 {sr(sC0)}, {sr(sT)}\ns_xor_b32 {sr(sT3)}, {sr(sK2)}, 1\ns_lshl_b32 {sr(sT3)}, {sr(sT3)}, 22\ns_add_u32 {sr(sT)}, {sr(sT)}, {sr(sT3)}')
    for t in range(2):
        for hf in range(2):
            for q in range(2): a(f'buffer_load_dwordx2 {vr(XR+8*t+4*hf+2*q,2)}, v71, {sr(R_X,4)}, {sr(sT)} offen offset:{t*64+hf*32+q*16}')
    for r in (BA+1,BA+2,BA+3,BA+5,BA+6,BA+7,BB+1,BB+2,BB+3): a(f'v_mov_b32 {vr(r)}, 0')
    a(f'v_mov_b32 {vr(BB)}, 0x3f80')
    a(f'v_bfe_u32 v72, {vr(vL)}, 2, 1\nv_cmp_eq_u32 vcc, v72, v68\nv_and_b32 v73, 1, {vr(vL)}\nv_lshlrev_b32 v73, 4, v73\nv_mov_b32 v74, 0x3f80\nv_lshlrev_b32 v74, v73, v74\nv_cndmask_b32 v74, 0, v74, vcc')
    a(f'v_bfe_u32 v72, {vr(vL)}, 1, 1\nv_bfe_u32 v73, {vr(vL)}, 3, 2\nv_lshl_add_u32 v72, v73, 1, v72')
    for r in range(8):
        a(f'v_cmp_eq_u32 vcc, {r}, v72\ns_nop 1\nv_cndmask_b32 {vr(E0+r)}, 0, v74, vcc')
    a(f'v_lshrrev_b32 v72, 2, {vr(vL)}\nv_and_b32 v73, 3, {vr(vL)}\nv_lshlrev_b32 v73, 3, v73\nv_lshl_add_u32 v72, v72, 7, v73')
    a(f's_lshl_b32 {sr(sT)}, {sr(sRB)}, 10\ns_add_u32 {sr(sT)}, {sr(sT)}, {WS_F2}')
    l=L('f2'); d=L('f2d')
    a(f's_mov_b32 {sr(sCNT)}, 0\ns_mov_b32 exec_hi, 0\n{l}:\nbuffer_load_dwordx2 v[74:75], v72, {sr(R_WS,4)}, {sr(sT)} offen sc1\ns_add_u32 {sr(sCNT)}, {sr(sCNT)}, 1\ns_waitcnt vmcnt(0)')
    a(f'v_cmp_ne_u64 vcc, {sr(sNON,2)}, v[74:75]\ns_cmp_gt_u32 {sr(sCNT)}, {cfg.spin}\ns_cbranch_scc1 {d}\ns_cbranch_vccz {d}\ns_sleep 8\ns_branch {l}\n{d}:\ns_mov_b64 exec, -1')
    stamp(a,9)
    a(f's_lshl_b32 {sr(sT)}, {sr(sRB)}, 3\ns_add_u32 {sr(sT)}, {sr(sT)}, {sr(sJ)}\ns_lshl_b32 {sr(sT)}, {sr(sT)}, 1\ns_add_u32 {sr(sT)}, {sr(sT)}, {sr(sK2)}\ns_lshl_b32 {sr(sT)}, {sr(sT)}, 15\ns_lshl_b32 {sr(sT2)}, {sr(sMT)}, 11\ns_add_u32 {sr(sT)}, {sr(sT)}, {sr(sT2)}\ns_add_u32 {sr(sT)}, {sr(sT)}, {WS_P}')
    def pload(s):
        for t in range(2):
            a(f's_add_u32 {sr(sT2)}, {sr(sT)}, {s*8192+t*4096}')
            for hf in range(2): a(f'buffer_load_dwordx4 {vr(LD+16*s+8*t+4*hf,4)}, {vr(vLA)}, {sr(R_WS,4)}, {sr(sT2)} offen offset:{hf*1024} sc1')
    pload(0); pload(1)
    a('s_setprio 0')
    for t in range(2): a(MF(FA+16*t,BA+4*t,BB,'0'))
    for hf in range(2):
        for t in range(2): a(MF(FA+16*t,E0+4*hf,XR+8*t+4*hf))
    for s in range(4):
        a(f's_waitcnt vmcnt({4 if s<3 else 0})')
        if s<2: pload(s+2)
        for hf in range(2):
            for t in range(2): a(MF(FA+16*t,E0+4*hf,LD+16*s+8*t+4*hf))
    a('s_setprio 2')
    vLB=240; vOUT=241; vXW=242; vXR=243; vB0=244; vB1=245
    XB=slot(0)+6*2304*4
    a(f's_lshl_b32 {sr(sT)}, {sr(sK2)}, 15\nv_add_u32 {vr(vB0)}, {sr(sT)}, {vr(vTR)}\nv_xor_b32 {vr(vB1)}, 64, {vr(vB0)}\nv_mov_b32 {vr(vLB)}, {vr(vLA)}')
    a(f'v_lshlrev_b32 {vr(vOUT)}, 10, v70\nv_lshl_add_u32 {vr(vOUT)}, v68, 4, {vr(vOUT)}')
    a(f's_lshl_b32 {sr(sT)}, {sr(sU)}, 12\ns_add_u32 {sr(sT)}, {sr(sT)}, {XB}\nv_add_u32 {vr(vXW)}, {sr(sT)}, {vr(vLA)}')
    a(f's_xor_b32 {sr(sT)}, {sr(sU)}, 2\ns_lshl_b32 {sr(sT)}, {sr(sT)}, 12\ns_add_u32 {sr(sT)}, {sr(sT)}, {XB}\nv_add_u32 {vr(vXR)}, {sr(sT)}, {vr(vLA)}')
    srd(a,R_T0,P_OUT,2048*1024)
    a(f's_lshl_b32 {sr(sT)}, {sr(sK2)}, 6\ns_add_u32 {sr(sC0)}, {sr(sT)}, {sr(sC0)}')
    a('v_mov_b32 v246, v202')
    ldspoll(a,247,246,C_WO-MISC,4)
    def WF(i): return 32+8*i if i<10 else 176+8*(i-10)
    for i in range(16):
        f=WF(i); o=i*2048
        a(f'ds_read_b64_tr_b16 {vr(f,2)}, {vr(vB0)} offset:{o}\nds_read_b64_tr_b16 {vr(f+2,2)}, {vr(vB0)} offset:{o+1024}')
        a(f'ds_read_b64_tr_b16 {vr(f+4,2)}, {vr(vB1)} offset:{o}\nds_read_b64_tr_b16 {vr(f+6,2)}, {vr(vB1)} offset:{o+1024}')
    sDN=sT3; sMK=sEX
    a(f's_lshl_b32 {sr(sT)}, {sr(sRB)}, 1\ns_add_u32 {sr(sT)}, {sr(sT)}, {sr(sK2)}\ns_lshl_b32 {sr(sT)}, {sr(sT)}, 15\ns_lshl_b32 {sr(sT2)}, {sr(sMT)}, 10\ns_add_u32 {sr(sT)}, {sr(sT)}, {sr(sT2)}\ns_add_u32 {sr(sT)}, {sr(sT)}, {WS_O}')
    a(f's_mov_b32 {sr(sDN)}, 0\ns_mov_b32 {sr(sCNT)}, 0\ns_mov_b64 {sr(sMK,2)}, -1\ns_waitcnt lgkmcnt(0)')
    stamp(a,10)
    a('s_barrier\ns_barrier')
    a('LOP:')
    for g in range(4):
        l=L('ol')
        a(f's_bitcmp1_b32 {sr(sDN)}, {g}\ns_cbranch_scc1 {l}')
        for i in range(4*g,4*g+4):
            if i%2==0: a(f's_add_u32 {sr(sT2)}, {sr(sT)}, {i*2048}')
            a(f'buffer_load_dwordx4 {vr(LD+4*i,4)}, {vr(vLB)}, {sr(R_WS,4)}, {sr(sT2)} offen offset:{(i%2)*2048} sc1')
        a(f'{l}:')
    a(f's_add_u32 {sr(sCNT)}, {sr(sCNT)}, 1\ns_cmp_gt_u32 {sr(sCNT)}, {cfg.spin}\ns_cselect_b64 {sr(sMK,2)}, 0, -1\ns_waitcnt vmcnt(0)')
    for g in range(4):
        l=L('oc')
        a(f's_bitcmp1_b32 {sr(sDN)}, {g}\ns_cbranch_scc1 {l}')
        for i in range(4*g,4*g+4):
            b=LD+4*i
            a(f'v_max3_u32 {vr(224+i%4)}, {vr(b)}, {vr(b+1)}, {vr(b+2)}')
        a(f'v_max3_u32 v224, v224, {vr(LD+16*g+3)}, {vr(LD+16*g+7)}\nv_max3_u32 v225, v225, {vr(LD+16*g+11)}, {vr(LD+16*g+15)}')
        a(f'v_max3_u32 v224, v224, v225, v226\nv_max_u32 v224, v224, v227\nv_cmp_eq_u32 vcc, -1, v224\ns_and_b64 vcc, vcc, {sr(sMK,2)}\ns_cbranch_vccnz {l}')
        for i in range(4*g,4*g+4):
            a(MF(FA,WF(i),LD+4*i)); a(MF(FA+16,WF(i)+4,LD+4*i))
        a(f's_bitset1_b32 {sr(sDN)}, {g}\n{l}:')
    a(f's_cmp_eq_u32 {sr(sDN)}, 15\ns_cbranch_scc0 LOP')
    stamp(a,11)
    l1=L('k1'); l2=L('kd')
    a(f's_cmp_eq_u32 {sr(sK2)}, 0\ns_cbranch_scc0 {l1}')
    a.nop(7)
    for i in range(4): a(f'ds_write_b128 {vr(vXW)}, {vr(FA+16+4*i,4)} offset:{1024*i}')
    a(f's_branch {l2}\n{l1}:')
    a.nop(5)
    for i in range(4): a(f'ds_write_b128 {vr(vXW)}, {vr(FA+4*i,4)} offset:{1024*i}')
    for i in range(8): a(f'v_mov_b64 {vr(FA+2*i,2)}, {vr(FA+16+2*i,2)}')
    a(f'{l2}:')
    a('s_waitcnt lgkmcnt(0)\ns_barrier')
    for i in range(4): a(f'ds_read_b128 {vr(32+4*i,4)}, {vr(vXR)} offset:{1024*i}')
    for i in range(4):
        a(f's_waitcnt lgkmcnt({3-i})')
        a(f'v_pk_add_f32 {vr(FA+4*i,2)}, {vr(FA+4*i,2)}, {vr(32+4*i,2)}\nv_pk_add_f32 {vr(FA+4*i+2,2)}, {vr(FA+4*i+2,2)}, {vr(32+4*i+2,2)}')
    pack(a,48,FA,16)
    a.nop(2)
    a('v_permlane32_swap_b32 v48, v50\nv_permlane32_swap_b32 v49, v51\nv_permlane32_swap_b32 v52, v54\nv_permlane32_swap_b32 v53, v55')
    a(f'buffer_store_dwordx4 v[48:51], {vr(vOUT)}, {sr(R_T0,4)}, {sr(sC0)} offen\nbuffer_store_dwordx4 v[52:55], {vr(vOUT)}, {sr(R_T0,4)}, {sr(sC0)} offen offset:32')
    stamp(a,12)
    dump_stamps(a)

HEAD=open('cdna_kernels/'+NAME+'.s.ref').read().split('; Override launch')[0]
def full():
    lab[0]=0
    a=build()
    if cfg.doalign: a.lines=align(a.lines)
    w=check(a.lines)
    for x in w: print('HAZARD',x,file=sys.stderr)
    t=HEAD+f'; @launch grid=(256,1,1) block=(512,1,1) lds={LDS_TOTAL}\n'
    t+=f'.amdgcn_target "amdgcn-amd-amdhsa--gfx950"\n.text\n.globl {NAME}_kernel\n.p2align 8\n.type {NAME}_kernel,@function\n{NAME}_kernel:\n'
    t+=a.text()+' s_endpgm\n'
    t+=f'''.section .rodata,"a"
.p2align 6
.amdhsa_kernel {NAME}_kernel
  .amdhsa_next_free_vgpr 256
  .amdhsa_next_free_sgpr 102
  .amdhsa_accum_offset 256
  .amdhsa_group_segment_fixed_size 0
  .amdhsa_kernarg_size 104
  .amdhsa_user_sgpr_count 2
  .amdhsa_user_sgpr_kernarg_segment_ptr 1
  .amdhsa_system_sgpr_workgroup_id_x 1
.end_amdhsa_kernel
'''
    return t
if __name__=='__main__':
    out=sys.argv[1]
    for kv in sys.argv[2:]:
        k,v=kv.split('='); setattr(cfg,k,eval(v))
    open(out,'w').write(full())
```
